```python
import torch

def _softmax(x, axis=-1):
    return torch.softmax(x, dim=axis)
def _gelu(x):
    return torch.nn.functional.gelu(x, approximate="tanh")
def _silu(x):
    return torch.nn.functional.silu(x)
def _sigmoid(x):
    return torch.sigmoid(x)
def _layernorm(x, axis=-1, eps=1e-5):
    m = x.mean(dim=axis, keepdim=True)
    v = x.var(dim=axis, keepdim=True, unbiased=False)
    return (x - m) / torch.sqrt(v + eps)
def _scatter_add(tgt, idx, src, axis=0):
    return tgt.clone().index_add_(axis, idx, src)
def _segment_sum(src, seg, n):
    out = torch.zeros((n,) + src.shape[1:], dtype=src.dtype)
    return out.index_add_(0, seg, src)
def _pad(x, pw):
    flat = tuple(v for pair in reversed(pw) for v in pair)
    return torch.nn.functional.pad(x, flat)

kernel_name = 'standalone__seq2seq_rnn_t_joint__speech'

def setup_inputs():

    _w = (lambda a: (lambda t: t.to(torch.bfloat16) if t.is_floating_point() else t)(torch.as_tensor(a)))
    B, T, D, K = 2, 4000, 512, 15
    U = 8
    sc = (1.0 / (K * D)) ** 0.5
    sd = (1.0 / D) ** 0.5
    return {
        "x": _w((lambda *s: torch.randn(*s, dtype=torch.bfloat16) * 0.4)(B, T, D) * 0.5),
        "w1": _w((lambda *s: torch.randn(*s, dtype=torch.bfloat16) * 3.2)(K, D, D) * sc),
        "w2": _w((lambda *s: torch.randn(*s, dtype=torch.bfloat16) * 3.2)(K, D, D) * sc),
        "g": _w((lambda *s: torch.randn(*s, dtype=torch.bfloat16) * 3.2)(B, U, D) * 0.5),
        "w_f": _w((lambda *s: torch.randn(*s, dtype=torch.bfloat16) * 3.2)(D, D) * sd),
        "w_g": _w((lambda *s: torch.randn(*s, dtype=torch.bfloat16) * 3.2)(D, D) * sd),
        "w_o": _w((lambda *s: torch.randn(*s, dtype=torch.bfloat16) * 3.2)(D, D) * sd),
    }

def reference(x, w1, w2, g, w_f, w_g, w_o):
    B, T, D = x.shape
    K = w1.shape[0]
    pad = K // 2
    xp = _pad(x, ((0,0),(pad,pad),(0,0)))
    h = torch.zeros_like(x)
    for i in range(K):
        h = h + torch.einsum("btc,cd->btd", xp[:, i:i+T, :], w1[i])
    h = _gelu(h)[:, ::2, :]
    T1 = h.shape[1]
    hp = _pad(h, ((0,0),(pad,pad),(0,0)))
    f = torch.zeros_like(h)
    for i in range(K):
        f = f + torch.einsum("btc,cd->btd", hp[:, i:i+T1, :], w2[i])
    f = _gelu(f)[:, ::2, :]
    fe = torch.einsum("btd,de->bte", f, w_f)
    ge = torch.einsum("bud,de->bue", g, w_g)
    j = torch.tanh(fe[:, :, None, :] + ge[:, None, :, :])
    return torch.einsum("btud,dv->btuv", j, w_o)
```

```python
class Prog:
    def __init__(self):
        self.lines = []
        self.on = True
    def I(self, s):
        if self.on:
            for x in s.split("\n"):
                self.lines.append("    " + x.strip())
    def L(self, s):
        if self.on: self.lines.append(s + ":")
    def C(self, s):
        if self.on: self.lines.append("    ; " + s)
    def raw(self, s):
        if self.on: self.lines.append(s)
    def text(self):
        return "\n".join(self.lines) + "\n"

class Tracker:
    def __init__(self, prog):
        self.p = prog
        self.vq = []; self.lq = []
        self.done = set()
        self.mode = 'auto'
        self.rec = []; self.ri = 0
    def start_record(self):
        self.mode = 'auto'; self.rec = []
    def start_replay(self, rec):
        self.mode = 'replay'; self.rec = rec; self.ri = 0
    def vm(self, tok):
        assert tok not in self.vq, tok
        self.vq.append(tok); self.done.discard(('v', tok))
    def lds(self, tok):
        assert tok not in self.lq, tok
        self.lq.append(tok); self.done.discard(('l', tok))
    def _apply(self, kind, n):
        q = self.vq if kind == 'v' else self.lq
        while len(q) > n:
            t = q.pop(0); self.done.add((kind, t))
    def _need(self, kind, toks):
        q = self.vq if kind == 'v' else self.lq
        mx = 63 if kind == 'v' else 15
        if self.mode == 'auto':
            n = None
            for tok in toks:
                if tok in q:
                    c = len(q) - 1 - q.index(tok)
                    n = c if n is None else min(n, c)
                else:
                    assert (kind, tok) in self.done, f"token {tok} never issued"
            if n is not None: n = min(n, mx)
            self.rec.append((kind, n))
        else:
            k, n = self.rec[self.ri]; self.ri += 1
            assert k == kind
        if n is not None:
            self._apply(kind, n)
            self.p.I(f"s_waitcnt {'vmcnt' if kind=='v' else 'lgkmcnt'}({n})")
        for tok in toks:
            assert tok not in q and (kind, tok) in self.done, f"wait insufficient for {tok} mode={self.mode} n={n} q={q}"
    def need_vm(self, *toks): self._need('v', toks)
    def need_lds(self, *toks): self._need('l', toks)
    def force_vm(self, n):
        self.p.I(f"s_waitcnt vmcnt({n})"); self._apply('v', n)
    def all_vm(self):
        self.p.I("s_waitcnt vmcnt(0)"); self._apply('v', 0)
    def all_lds(self):
        self.p.I("s_waitcnt lgkmcnt(0)"); self._apply('l', 0)

def circ_color(intervals, period, ncolors):
    def cells(iv):
        s, e = iv
        if e >= s: return set(range(s, e + 1))
        return set(range(s, period)) | set(range(0, e + 1))
    keys = sorted(intervals, key=lambda k: intervals[k][0])
    cs = {k: cells(intervals[k]) for k in keys}
    assign = {}
    used = [set() for _ in range(ncolors)]
    def bt(i):
        if i == len(keys): return True
        k = keys[i]
        for c in range(ncolors):
            if not (used[c] & cs[k]):
                used[c] |= cs[k]; assign[k] = c
                if bt(i + 1): return True
                used[c] -= cs[k]; del assign[k]
        return False
    assert bt(0), "coloring failed"
    return assign
```

```python
from asmlib import *
import math

C0 = -2.0 * math.sqrt(2.0 / math.pi) * math.log2(math.e)
C1 = C0 * 0.044715
import struct
def f32(x): return "0x%08x" % struct.unpack("<I", struct.pack("<f", x))[0]

WS_H   = 0x0000000
WS_W2  = 0x0400000
WS_WF  = 0x0C00000
WS_WG  = 0x0C80000
WS_WO  = 0x0D00000
WS_F   = 0x0E00000
WS_EA  = 0x1000000
WS_EB  = 0x1400000
WS_FLAG= 0x1410000
OOB = 0x40000000

XB = [0, 36864]
WF = 73728
SCR = 155648

def tap_of(s): return 2 * s if s < 8 else 2 * (s - 8) + 1

def x_slots(nslots=18):
    U = 4; per = 15 * U
    iv = {}
    load_step = {}
    for sg in range(15):
        load_step[(0, sg)] = (11 + sg // 2) if sg < 8 else min((sg - 8) // 2, 3)
        last = min(sg, 7)
        iv[(0, sg)] = (load_step[(0, sg)] * U, last * U + U - 1)
    for sg in range(14):
        load_step[(1, sg)] = (4 + sg // 2) if sg < 8 else 8 + (sg - 8) // 2
        last = 8 + min(sg, 6)
        iv[(1, sg)] = (load_step[(1, sg)] * U, last * U + U - 1)
    col = circ_color(iv, per, nslots)
    return col, load_step

def gelu_pairs(p, regs, tmp, vC0, vC1, vOne):
    n = len(regs)
    for i in range(n): p.I(f"v_pk_mul_f32 v[{tmp[i]}:{tmp[i]+1}], v[{regs[i]}:{regs[i]+1}], v[{regs[i]}:{regs[i]+1}]")
    for i in range(n): p.I(f"v_pk_fma_f32 v[{tmp[i]}:{tmp[i]+1}], v[{tmp[i]}:{tmp[i]+1}], v[{vC1}:{vC1+1}], v[{vC0}:{vC0+1}]")
    for i in range(n): p.I(f"v_pk_mul_f32 v[{tmp[i]}:{tmp[i]+1}], v[{tmp[i]}:{tmp[i]+1}], v[{regs[i]}:{regs[i]+1}]")
    for i in range(n):
        p.I(f"v_exp_f32 v{tmp[i]}, v{tmp[i]}"); p.I(f"v_exp_f32 v{tmp[i]+1}, v{tmp[i]+1}")
    for i in range(n): p.I(f"v_pk_add_f32 v[{tmp[i]}:{tmp[i]+1}], v[{tmp[i]}:{tmp[i]+1}], v[{vOne}:{vOne+1}]")
    for i in range(n):
        p.I(f"v_rcp_f32 v{tmp[i]}, v{tmp[i]}"); p.I(f"v_rcp_f32 v{tmp[i]+1}, v{tmp[i]+1}")
    for i in range(n): p.I(f"v_pk_mul_f32 v[{regs[i]}:{regs[i]+1}], v[{regs[i]}:{regs[i]+1}], v[{tmp[i]}:{tmp[i]+1}]")

WS_STAMP = 0x2000000
class Stamps:
    def __init__(self, P, on, kidx): self.P, self.on, self.k, self.n = P, on, kidx, 0
    def stamp(self, cyc=None):
        if not self.on: return
        i = self.n; self.n += 1
        assert i < 5
        self.P.I(f"s_memrealtime s[{88+2*i}:{89+2*i}]")
        if cyc is not None: self.P.I(f"s_memtime s[{98+2*cyc}:{99+2*cyc}]")
    def flush(self, sWs, sWave):
        if not self.on: return
        P = self.P
        P.I("s_waitcnt lgkmcnt(0)")
        P.I(f"s_add_u32 s56, s{sWs}, {WS_STAMP + self.k*65536}\ns_addc_u32 s57, s{sWs+1}, 0\ns_mov_b32 s58, 131072\ns_mov_b32 s59, 0x20000")
        P.I(f"s_lshl_b32 s60, s2, 8\ns_lshl_b32 s61, s{sWave}, 6\ns_add_u32 s60, s60, s61")
        P.I("s_mov_b64 exec, 1\nv_mov_b32 v1, s60")
        for i in range(self.n):
            P.I(f"v_mov_b32 v2, s{88+2*i}\ns_nop 0")
            P.I(f"buffer_store_dword v2, v1, s[56:59], 0 offen offset:{4*i}\ns_nop 1")
        P.I(f"s_sub_u32 s98, s100, s98\nv_mov_b32 v2, s98\ns_nop 0\nbuffer_store_dword v2, v1, s[56:59], 0 offen offset:32")
        P.I(f"v_mov_b32 v2, {self.n}\ns_nop 0\nbuffer_store_dword v2, v1, s[56:59], 0 offen offset:36")
        P.I("s_waitcnt vmcnt(0)")

def gen_conv(p, which, name, oflav="sc1", side=True, stamps=False, D2=8, pdbg=False, sflav="sc1", sideskip=()):
    P = p
    K1 = which == 1
    ST = Stamps(P, stamps, which - 1)
    nD = 4 if K1 else 2
    NM = 8 * nD
    xcol, xload = x_slots()
    XBUF = 36864
    vLane = 2
    vXpat = [4, 5, 6, 7]; vK0 = [8, 9]; vXr = [10, 11]; vW = [12, 13, 14, 15]; vWr = [16, 17, 18, 19]
    vW2 = 12
    vSl = [26, 27]; vSw, vSr, vSd, vPo, vLin = 28, 29, 30, 31, 25
    ACC = 128
    def acc(n, m): return ACC + (n * nD + m) * 4
    def aX(e, sg): return xcol[(e, sg)] * 4
    AW = 72
    def aW(m): return AW + 4 * m
    def aW2(S, m): return AW + ((S % 15) * 2 + m) * 4
    ARAW, ASF = 88, 104
    sSRDX, sSRDW, sSRDH = 8, 12, 16
    sWs = 20
    sW_, sWbase, sWnext, sXa, sXb, sXlds, sWlds, sIt, sT, sOOB = 28, 29, 30, 31, 32, 33, 34, 35, 36, 37
    sT0, sD0, sB, sDelta = 38, 39, 40, 62
    sSRDS, sSRDD = 24, 52
    sSoff = 51
    TIN = 4000 if K1 else 2000
    P.raw(f".globl {name}\n.p2align 8\n.type {name},@function\n{name}:")
    P.I("s_cmp_ge_u32 s2, 256"); P.I(f"s_cbranch_scc1 {name}_end")
    ST.stamp()
    if K1: P.I("s_load_dwordx4 s[4:7], s[0:1], 0")
    P.I(f"s_load_dwordx2 s[{sWs}:{sWs+1}], s[0:1], 72")
    P.I(f"v_lshrrev_b32 v1, 6, v0\nv_and_b32 v{vLane}, 63, v0")
    P.I(f"s_and_b32 s41, s2, 7\ns_lshr_b32 s42, s2, 3")
    P.I(f"v_readfirstlane_b32 s{sW_}, v1")
    if K1:
        P.I("s_and_b32 s43, s41, 1\ns_lshl_b32 s43, s43, 2\ns_and_b32 s44, s42, 3\ns_add_u32 s43, s43, s44")
        P.I("s_lshr_b32 s45, s41, 1\ns_lshl_b32 s45, s45, 3\ns_lshr_b32 s46, s42, 2\ns_add_u32 s45, s45, s46")
        P.I(f"s_lshr_b32 s{sB}, s45, 4\ns_and_b32 s45, s45, 15\ns_mul_i32 s{sT0}, s45, 125\ns_lshl_b32 s{sD0}, s43, 7")
    else:
        P.I("s_lshr_b32 s43, s41, 1\ns_lshl_b32 s43, s43, 2\ns_and_b32 s44, s42, 3\ns_add_u32 s43, s43, s44")
        P.I(f"s_and_b32 s{sB}, s41, 1\ns_lshr_b32 s45, s42, 2\ns_mul_i32 s{sT0}, s45, 125\ns_lshl_b32 s{sD0}, s43, 6")
    P.I(f"s_mov_b32 s{sOOB}, {OOB}")
    P.I("s_waitcnt lgkmcnt(0)")
    if K1:
        P.I(f"s_mul_i32 s46, s{sB}, 4096000")
        P.I(f"s_add_u32 s{sSRDX}, s4, s46\ns_addc_u32 s{sSRDX+1}, s5, 0\ns_mov_b32 s{sSRDX+2}, 4096000\ns_mov_b32 s{sSRDX+3}, 0x20000")
        P.I(f"s_mov_b32 s{sSRDW}, s6\ns_mov_b32 s{sSRDW+1}, s7\ns_mov_b32 s{sSRDW+2}, 7864320\ns_mov_b32 s{sSRDW+3}, 0x20000")
        P.I(f"s_mul_i32 s46, s{sB}, 2048000\ns_add_u32 s46, s46, {WS_H}")
        P.I(f"s_add_u32 s{sSRDH}, s{sWs}, s46\ns_addc_u32 s{sSRDH+1}, s{sWs+1}, 0\ns_mov_b32 s{sSRDH+2}, 2048000\ns_mov_b32 s{sSRDH+3}, 0x20000")
    else:
        P.I(f"s_mul_i32 s46, s{sB}, 2048000\ns_add_u32 s46, s46, {WS_H}")
        P.I(f"s_add_u32 s{sSRDX}, s{sWs}, s46\ns_addc_u32 s{sSRDX+1}, s{sWs+1}, 0\ns_mov_b32 s{sSRDX+2}, 2048000\ns_mov_b32 s{sSRDX+3}, 0x20000")
        P.I(f"s_lshl_b32 s46, s43, 2\ns_add_u32 s46, s46, s{sW_}\ns_mul_i32 s46, s46, 122880\ns_add_u32 s46, s46, {WS_W2}")
        P.I(f"s_add_u32 s{sSRDW}, s{sWs}, s46\ns_addc_u32 s{sSRDW+1}, s{sWs+1}, 0\ns_mov_b32 s{sSRDW+2}, 122880\ns_mov_b32 s{sSRDW+3}, 0x20000")
        P.I(f"s_mul_i32 s46, s{sB}, 1024000\ns_add_u32 s46, s46, {WS_F}")
        P.I(f"s_add_u32 s{sSRDH}, s{sWs}, s46\ns_addc_u32 s{sSRDH+1}, s{sWs+1}, 0\ns_mov_b32 s{sSRDH+2}, 1024000\ns_mov_b32 s{sSRDH+3}, 0x20000")
    P.I(f"s_lshl_b32 s46, s{sT0}, 11\ns_lshl_b32 s47, s{sW_}, 13\ns_add_u32 s46, s46, s47\ns_sub_u32 s{sXa}, s46, 8192")
    P.I(f"s_cmp_eq_u32 s46, 0")
    P.I(f"s_cselect_b32 s{sXb}, 0, s{sXa}\ns_cselect_b32 s48, 1, 0")
    P.I(f"s_lshl_b32 s{sXlds}, s{sW_}, 10")
    P.I(f"v_lshrrev_b32 v3, 4, v{vLane}")
    P.I(f"v_and_b32 v20, 15, v{vLane}")
    P.I(f"v_lshlrev_b32 v21, 11, v3\nv_add_u32 v21, 1024, v21")
    P.I(f"s_lshr_b32 s49, s{sW_}, 1")
    for kk in range(4):
        P.I(f"s_add_u32 s50, s49, {2*kk}\ns_and_b32 s50, s50, 7\ns_lshl_b32 s50, s50, 1")
        P.I(f"v_xor_b32 v22, s50, v20\nv_lshl_add_u32 v{vXpat[kk]}, v22, 4, v21")
    P.I(f"v_mov_b32 v{vK0[0]}, v{vXpat[0]}\nv_add_u32 v{vK0[1]}, 1024, v{vXpat[0]}")
    P.I(f"s_cmp_eq_u32 s48, 0\ns_cbranch_scc1 {name}_nospecial")
    P.I(f"v_mov_b32 v{vK0[0]}, s{sOOB}\nv_lshlrev_b32 v22, 4, v20\nv_mov_b32 v23, s{sOOB}")
    P.I(f"v_cmp_eq_u32 vcc, 3, v3\ns_nop 1\nv_cndmask_b32 v{vK0[1]}, v23, v22, vcc")
    P.L(f"{name}_nospecial")
    T = Tracker(P)
    def xdma(e, k, it, bufoff=0):
        def setup():
            P.I(f"s_add_u32 m0, s{sXlds}, {e*XBUF + k*4096 + bufoff}")
            if k: P.I(f"s_add_u32 s{sT}, s{sXa}, {e*1024 + k*32768}")
            else: P.I("s_nop 0")
        def go():
            if k: P.I(f"buffer_load_dwordx4 v{vXpat[k&3]}, s[{sSRDX}:{sSRDX+3}], s{sT} offen lds")
            else: P.I(f"buffer_load_dwordx4 v{vK0[e]}, s[{sSRDX}:{sSRDX+3}], s{sXb} offen lds")
            T.vm(('X', it, e, k))
        return setup, go
    if pdbg: ST.stamp()
    for k in range(9):
        s_, g_ = xdma(0, k, 0); s_(); g_()
    if K1:
        P.I(f"s_mul_i32 s{sWlds}, s{sW_}, 20480\ns_add_u32 s{sWlds}, s{sWlds}, {WF}")
        P.I(f"s_lshl_b32 s{sWbase}, s{sW_}, 15\ns_add_u32 s{sWbase}, s{sWbase}, s{sD0}\ns_add_u32 s{sWnext}, s{sWbase}, 131072")
        P.I(f"v_lshrrev_b32 v22, 3, v{vLane}")
        P.I(f"v_and_b32 v23, 1, v22\nv_lshlrev_b32 v23, 3, v23")
        P.I(f"v_bfe_u32 v24, v22, 1, 1\nv_lshl_add_u32 v23, v24, 2, v23")
        P.I(f"v_lshrrev_b32 v24, 2, v22\nv_lshl_add_u32 v23, v24, 4, v23")
        P.I(f"v_lshlrev_b32 v23, 10, v23\nv_and_b32 v24, 7, v{vLane}")
        for k in range(4):
            P.I(f"v_xor_b32 v25, {2*k}, v24\nv_lshl_add_u32 v{vW[k]}, v25, 4, v23")
    else:
        P.I(f"v_lshlrev_b32 v{vW2}, 4, v{vLane}\ns_mov_b32 s{sWbase}, 0")
    def wdma_setup(S):
        def f():
            s = S % 15
            cur = S < 5 or (S // 15) == ((S - 5) // 15)
            base = sWbase if cur else sWnext
            P.I(f"s_add_u32 m0, s{sWlds}, {(S % 5) * 4096}")
            P.I(f"s_add_u32 s{sT}, s{base}, {tap_of(s) * 524288}")
        return f
    def wdma(S, k):
        def f():
            P.I(f"buffer_load_dwordx4 v{vW[k]}, s[{sSRDW}:{sSRDW+3}], s{sT} offen offset:{k*1024} lds")
            T.vm(('W', S, k))
        return f
    def wload2(S, m):
        def f():
            r = aW2(S, m)
            P.I(f"buffer_load_dwordx4 a[{r}:{r+3}], v{vW2}, s[{sSRDW}:{sSRDW+3}], s{sWbase} offen offset:{m*1024}")
            T.vm(('W', S, m))
            if m == 1: P.I(f"s_add_u32 s{sWbase}, s{sWbase}, 2048")
        return f
    def wread(S, m, hh):
        def f():
            P.I(f"ds_read_b64_tr_b16 a[{aW(m)+2*hh}:{aW(m)+2*hh+1}], v{vWr[m]} offset:{(S%5)*4096 + hh*256}")
            T.lds(('W', S, m, hh))
        return f
    def xread(it, e, sg):
        def f():
            r = aX(e, sg)
            P.I(f"ds_read_b128 a[{r}:{r+3}], v{vXr[sg>>3]} offset:{e*XBUF + sg*256}")
            T.lds(('X', it, e, sg))
        return f
    def side_rawload(r):
        def f():
            for h in range(2):
                for k2 in range(2):
                    a = ARAW + (h * 2 + k2) * 4
                    if 'raw' in sideskip:
                        T.done.add(('v', ('SR', r, h, k2))); continue
                    P.I(f"buffer_load_dwordx4 a[{a}:{a+3}], v{vSl[k2]}, s[{sSRDS}:{sSRDS+3}], s{sSoff} offen offset:{h*64}")
                    T.vm(('SR', r, h, k2))
        return f
    def side_write(r, h):
        def f():
            if h == 0: T.force_vm(15)
            T.need_vm(('SR', r, h, 0), ('SR', r, h, 1))
            if h == 1: T.need_lds(*[('ST', r, m, hh) for m in (0, 1) for hh in (0, 1)])
            for k2 in range(2):
                a = ARAW + (h * 2 + k2) * 4
                if 'lds' in sideskip or 'wr' in sideskip:
                    T.done.add(('l', ('SW', r, h, k2))); continue
                P.I(f"ds_write_b128 v{vSw}, a[{a}:{a+3}] offset:{k2*1024}")
                T.lds(('SW', r, h, k2))
        return f
    def side_tr(r, m):
        def f():
            if m & 1 == 0: T.need_lds(('SW', r, m >> 1, 0), ('SW', r, m >> 1, 1))
            for hh in range(2):
                a = ASF + 4 * m + 2 * hh
                if 'lds' in sideskip or 'tr' in sideskip:
                    T.done.add(('l', ('ST', r, m, hh))); continue
                P.I(f"ds_read_b64_tr_b16 a[{a}:{a+1}], v{vSr} offset:{hh*256 + (m&1)*32}")
                T.lds(('ST', r, m, hh))
        return f
    SD = 88
    def side_store(r, m):
        def f():
            T.need_lds(('ST', r, m, 0), ('ST', r, m, 1))
            a = ASF + 4 * m
            if 'store' in sideskip: return
            P.I(f"buffer_store_dwordx4 a[{a}:{a+3}], v{vSd}, s[{sSRDD}:{sSRDD+3}], s{sDst[m]} offen {sflav}")
            T.vm(('SS', r, m))
        return f
    if K1:
        for S in range(5):
            if S in (1, 2):
                for k in (range(0, 5) if S == 1 else range(5, 9)):
                    s_, g_ = xdma(1, k, 0); s_(); g_()
            wdma_setup(S)()
            for k in range(4): wdma(S, k)()
        XA = 1
    else:
        XA = 2
        for S in range(D2):
            if S == 1:
                for k in range(9):
                    s_, g_ = xdma(1, k, 0); s_(); g_()
            for m in range(2): wload2(S, m)()
        P.I(f"s_add_u32 s{sXa}, s{sXa}, 256\ns_add_u32 s{sXb}, s{sXb}, 256")
        for e in range(2):
            for k in range(9):
                s_, g_ = xdma(e, k, 1, bufoff=2*XBUF); s_(); g_()
        P.I(f"s_mov_b32 s{sDelta}, {2*XBUF}")
    P.I(f"s_add_u32 s{sXa}, s{sXa}, 256\ns_add_u32 s{sXb}, s{sXb}, 256\ns_mov_b32 s{sIt}, 0")
    P.I(f"s_lshl_b32 s50, s{sW_}, 2\nv_add_u32 v22, s50, v3")
    for h in range(2):
        P.I(f"v_add_u32 v23, {h}, v20\nv_and_b32 v23, 7, v23\nv_lshlrev_b32 v23, 1, v23\nv_xor_b32 v23, v23, v22\nv_lshlrev_b32 v23, 4, v23")
        P.I(f"v_lshl_add_u32 v{vXr[h]}, v20, 11, v23")
    if K1:
        P.I(f"v_lshrrev_b32 v22, 2, v20\nv_and_b32 v23, 3, v20")
        P.I(f"v_and_b32 v24, 1, v3\nv_lshrrev_b32 v25, 1, v3\nv_lshl_add_u32 v24, v25, 2, v24\nv_lshlrev_b32 v24, 7, v24")
        P.I(f"v_lshl_add_u32 v24, v22, 10, v24\nv_lshl_add_u32 v24, v23, 3, v24\nv_add_u32 v24, s{sWlds}, v24")
        for m in range(4):
            P.I(f"v_xor_b32 v25, {m}, v22\nv_lshl_add_u32 v{vWr[m]}, v25, 5, v24")
    side = side and K1
    if side:
        sSrc = [64, 68]
        sDstAll = [72, 77, 82]
        sDst = sDstAll[0:1][0]; sDst = [72, 73, 74, 75]; sIsO = 76
        P.I("s_load_dwordx2 s[42:43], s[0:1], 16\ns_load_dwordx4 s[44:47], s[0:1], 32\ns_load_dwordx2 s[48:49], s[0:1], 48")
        P.I(f"v_lshrrev_b32 v21, 2, v{vLane}\nv_and_b32 v24, 3, v{vLane}\nv_lshlrev_b32 v24, 4, v24\nv_lshl_add_u32 v{vSl[0]}, v21, 10, v24\nv_add_u32 v{vSl[1]}, 16384, v{vSl[0]}")
        P.I(f"s_lshl_b32 s50, s{sW_}, 11\ns_add_u32 s50, s50, {SCR}")
        P.I(f"v_lshlrev_b32 v{vLin}, 4, v{vLane}\nv_add_u32 v{vSw}, s50, v{vLin}")
        P.I(f"v_lshl_add_u32 v21, v3, 3, v22\nv_lshlrev_b32 v21, 6, v21\nv_lshl_add_u32 v21, v23, 3, v21\nv_add_u32 v{vSr}, s50, v21")
        P.I(f"v_lshrrev_b32 v21, 1, v3\nv_lshlrev_b32 v21, 11, v21\nv_and_b32 v24, 1, v3\nv_lshl_add_u32 v21, v24, 9, v21\nv_lshl_add_u32 v{vPo}, v20, 4, v21")
        P.I(f"s_lshl_b32 s50, s2, 2\ns_add_u32 s50, s50, s{sW_}")
        P.I("s_waitcnt lgkmcnt(0)")
        P.I(f"s_mov_b32 s{sSRDD}, s{sWs}\ns_mov_b32 s{sSRDD+1}, s{sWs+1}\ns_mov_b32 s{sSRDD+2}, {WS_F}\ns_mov_b32 s{sSRDD+3}, 0x20000")
        def w2_params(sBk, dst, srcoff):
            P.I(f"s_lshr_b32 s56, s{sBk}, 7\ns_bfe_u32 s57, s{sBk}, 0x40003\ns_and_b32 s58, s{sBk}, 7")
            P.I(f"s_lshl_b32 s59, s56, 19\ns_lshl_b32 s60, s57, 15\ns_add_u32 s59, s59, s60\ns_lshl_b32 s60, s58, 7\ns_add_u32 s{srcoff}, s59, s60")
            P.I(f"s_lshr_b32 s59, s56, 1\ns_and_b32 s60, s56, 1\ns_lshl_b32 s60, s60, 3\ns_add_u32 s59, s59, s60")
            P.I(f"s_lshl_b32 s60, s58, 3\ns_and_b32 s61, s57, 3\ns_add_u32 s60, s60, s61\ns_lshl_b32 s60, s60, 2\ns_lshr_b32 s61, s57, 2\ns_add_u32 s60, s60, s61")
            P.I(f"s_mul_i32 s60, s60, 15\ns_add_u32 s60, s60, s59\ns_lshl_b32 s60, s60, 11\ns_add_u32 s{dst}, s60, {WS_W2}")
            P.I(f"s_add_u32 s{dst+1}, s{dst}, 1024\ns_add_u32 s{dst+2}, s{dst}, 491520\ns_add_u32 s{dst+3}, s{dst}, {491520+1024}\ns_mov_b32 s{dst+4}, 0")
        def sq_params(sBq, dst, srcoff, base, isO):
            P.I(f"s_lshr_b32 s56, s{sBq}, 3\ns_and_b32 s58, s{sBq}, 7")
            P.I(f"s_lshl_b32 s59, s56, 15\ns_lshl_b32 s60, s58, 7\ns_add_u32 s{srcoff}, s59, s60")
            if not isO:
                P.I(f"s_lshl_b32 s59, s58, 16\ns_lshl_b32 s60, s56, 10\ns_add_u32 s59, s59, s60\ns_add_u32 s{dst}, s59, {base}")
                P.I(f"s_add_u32 s{dst+1}, s{dst}, 16384\ns_add_u32 s{dst+2}, s{dst}, 32768\ns_add_u32 s{dst+3}, s{dst}, 49152\ns_mov_b32 s{dst+4}, 0")
            else:
                P.I(f"s_lshl_b32 s59, s58, 16\ns_lshl_b32 s60, s56, 12\ns_add_u32 s59, s59, s60\ns_add_u32 s{dst}, s59, {base}")
                P.I(f"s_add_u32 s{dst+1}, s{dst}, 256\ns_add_u32 s{dst+2}, s{dst}, 1024\ns_add_u32 s{dst+3}, s{dst}, 1280\ns_mov_b32 s{dst+4}, 1")
        w2_params(50, sDstAll[0], sSoff)
        P.I(f"s_mov_b32 s{sSRDS}, s42\ns_mov_b32 s{sSRDS+1}, s43\ns_mov_b32 s{sSRDS+2}, 7864320\ns_mov_b32 s{sSRDS+3}, 0x20000")
        side_rawload(0)()
        P.I(f"s_cmp_ge_u32 s50, 896\ns_cbranch_scc1 {name}_r1b")
        P.I("s_add_u32 s63, s50, 1024")
        w2_params(63, sDstAll[1], sSrc[0] + 3)
        P.I(f"s_mov_b32 s{sSrc[0]}, s42\ns_mov_b32 s{sSrc[0]+1}, s43\ns_mov_b32 s{sSrc[0]+2}, 7864320\ns_branch {name}_r1c")
        P.L(f"{name}_r1b")
        P.I("s_sub_u32 s63, s50, 896")
        sq_params(63, sDstAll[1], sSrc[0] + 3, WS_WF, False)
        P.I(f"s_mov_b32 s{sSrc[0]}, s44\ns_mov_b32 s{sSrc[0]+1}, s45\ns_mov_b32 s{sSrc[0]+2}, 524288")
        P.L(f"{name}_r1c")
        P.I(f"s_cmp_ge_u32 s50, 128\ns_cbranch_scc1 {name}_r2b")
        sq_params(50, sDstAll[2], sSrc[1] + 3, WS_WG, False)
        P.I(f"s_mov_b32 s{sSrc[1]}, s46\ns_mov_b32 s{sSrc[1]+1}, s47\ns_mov_b32 s{sSrc[1]+2}, 524288\ns_branch {name}_r2d")
        P.L(f"{name}_r2b")
        P.I(f"s_cmp_ge_u32 s50, 256\ns_cbranch_scc1 {name}_r2c")
        P.I("s_sub_u32 s63, s50, 128")
        sq_params(63, sDstAll[2], sSrc[1] + 3, WS_WO, True)
        P.I(f"s_mov_b32 s{sSrc[1]}, s48\ns_mov_b32 s{sSrc[1]+1}, s49\ns_mov_b32 s{sSrc[1]+2}, 524288\ns_branch {name}_r2d")
        P.L(f"{name}_r2c")
        P.I(f"s_mov_b32 s{sSrc[1]}, s48\ns_mov_b32 s{sSrc[1]+1}, s49\ns_mov_b32 s{sSrc[1]+2}, 0\ns_mov_b32 s{sSrc[1]+3}, 0")
        for i in range(4): P.I(f"s_mov_b32 s{sDstAll[2]+i}, s{sOOB}")
        P.I(f"s_mov_b32 s{sDstAll[2]+4}, 0")
        P.L(f"{name}_r2d")
        P.I(f"s_mov_b32 s{sSRDS}, s{sSrc[0]}\ns_mov_b32 s{sSRDS+1}, s{sSrc[0]+1}\ns_mov_b32 s{sSRDS+2}, s{sSrc[0]+2}\ns_mov_b32 s{sSoff}, s{sSrc[0]+3}")
        P.I(f"v_mov_b32 v{vSd}, v{vLin}")
    for i in range(8 * nD * 4): P.I(f"v_mov_b32 v{ACC+i}, 0")
    if pdbg: ST.stamp()
    T.need_vm(*[('X', 0, 0, k) for k in range(9)])
    if pdbg: ST.stamp()
    P.I("s_barrier")
    for sg in range(8): xread(0, 0, sg)()
    if K1:
        T.need_vm(*[('W', 0, k) for k in range(4)])
        for m in range(3):
            for hh in range(2): wread(0, m, hh)()
    T.all_lds()
    def body(it):
        for s in range(15):
            S = it * 15 + s
            e = 0 if s < 8 else 1; j = s if s < 8 else s - 8
            fill = [[] for _ in range(NM)]
            xr = sorted([(ee, sg) for (ee, sg), st in xload.items() if st == s])
            if K1:
                fill[0].append(wread(S, 3, 0)); fill[1].append(wread(S, 3, 1))
                fill[8].append(lambda S=S: T.need_vm(*[('W', S + 1, k) for k in range(4)]))
                fill[9].append(wread(S + 1, 0, 0)); fill[10].append(wread(S + 1, 0, 1))
                fill[16].append(wread(S + 1, 1, 0)); fill[17].append(wread(S + 1, 1, 1))
                fill[24].append(wread(S + 1, 2, 0)); fill[25].append(wread(S + 1, 2, 1))
                fill[18].append(wdma_setup(S + 5))
                fill[19].append(lambda S=S: T.need_lds(('W', S, 3, 0), ('W', S, 3, 1)))
                for k, pos in enumerate((20, 22, 26, 28)): fill[pos].append(wdma(S + 5, k))
                xpos = (12, 14, 3, 5)
                xd = {4: (0, range(0, 5)), 5: (0, range(5, 9)), 11: (1, range(0, 5)), 12: (1, range(5, 9))}
                xdp = ((2, 3), (4, 5), (6, 7), (11, 13), (14, 15))
            else:
                fill[1].append(wload2(S + D2, 0)); fill[9].append(wload2(S + D2, 1))
                xpos = (3, 11, 6, 14)
                xd = {4: (0, range(0, 3)), 5: (0, range(3, 6)), 6: (0, range(6, 9)), 11: (1, range(0, 3)), 12: (1, range(3, 6)), 13: (1, range(6, 9))}
                xdp = ((4, 5), (7, 8), (12, 13))
            for (ee, sg), pos in zip(xr, xpos):
                iit = it + 1 if (ee == 0 and sg < 8) else it
                fill[pos].append(xread(iit, ee, sg))
            if s in xd:
                ee, ks = xd[s]
                for k, (ps, pg) in zip(ks, xdp):
                    s_, g_ = xdma(ee, k, it + XA)
                    fill[ps].append(s_); fill[pg].append(g_)
            if side:
                sj = {3: [(27, side_write(it, 0))], 4: [(27, side_tr(it, 0)), (29, side_tr(it, 1))], 5: [(27, side_store(it, 0)), (29, side_store(it, 1)), (30, side_write(it, 1))],
                      6: [(27, side_tr(it, 2)), (29, side_tr(it, 3))], 7: [(27, side_store(it, 2)), (29, side_store(it, 3))],
                      8: [(27, side_rawload(it + 1))]}
                for pos, f in sj.get(s, []): fill[pos].append(f)
                if s == 9:
                    def shift():
                        P.I(f"s_mov_b32 s{sSRDS}, s{sSrc[1]}\ns_mov_b32 s{sSRDS+1}, s{sSrc[1]+1}\ns_mov_b32 s{sSRDS+2}, s{sSrc[1]+2}\ns_mov_b32 s{sSoff}, s{sSrc[1]+3}")
                    def shift1():
                        P.I(f"s_mov_b32 s{sSrc[1]+2}, 0")
                        for i in range(5): P.I(f"s_mov_b32 s{sDstAll[0]+i}, s{sDstAll[1]+i}")
                    def shift2():
                        for i in range(5): P.I(f"s_mov_b32 s{sDstAll[1]+i}, s{sDstAll[2]+i}")
                    def shift3():
                        for i in range(4): P.I(f"s_mov_b32 s{sDstAll[2]+i}, s{sOOB}")
                        P.I(f"s_cmp_eq_u32 s{sIsO}, 1\ns_cselect_b64 vcc, -1, 0")
                    def shift4():
                        P.I(f"v_cndmask_b32 v{vSd}, v{vLin}, v{vPo}, vcc")
                    if 'shift' not in sideskip:
                        fill[2].append(shift); fill[4].append(shift1); fill[6].append(shift2); fill[11].append(shift3); fill[13].append(shift4)
            if s == 14:
                q = NM // 32 if K1 else 0
                fill[2].append(lambda: P.I(f"s_add_u32 s{sIt}, s{sIt}, 1"))
                if K1:
                    fill[29].append(lambda: P.I(f"s_add_u32 s{sWbase}, s{sWbase}, 131072\ns_add_u32 s{sWnext}, s{sWnext}, 131072"))
                    fill[30].append(lambda: P.I(f"s_add_u32 s{sXa}, s{sXa}, 256\ns_add_u32 s{sXb}, s{sXb}, 256"))
                    fill[31].append(lambda: P.I(f"s_cmp_eq_u32 s{sIt}, 3\ns_cselect_b32 s{sWnext}, s{sOOB}, s{sWnext}\ns_cselect_b32 s{sXa}, s{sOOB}, s{sXa}\ns_cselect_b32 s{sXb}, s{sOOB}, s{sXb}"))
                else:
                    fill[13].append(lambda: P.I(f"s_add_u32 s{sXa}, s{sXa}, 256\ns_add_u32 s{sXb}, s{sXb}, 256"))
                    fill[14].append(lambda: P.I(f"s_xor_b32 s{sXlds}, s{sXlds}, s63"))
                    fill[15].append(lambda: P.I(f"s_cmp_ge_u32 s{sIt}, 2\ns_cselect_b32 s{sXa}, s{sOOB}, s{sXa}\ns_cselect_b32 s{sXb}, s{sOOB}, s{sXb}"))
            if (not K1) and s == 11:
                pass
            for pp in range(NM):
                m, n = pp >> 3, pp & 7
                if K1:
                    if n == 0: T.need_lds(('W', S, m, 0), ('W', S, m, 1))
                    wa = aW(m)
                else:
                    if n == 0: T.need_vm(('W', S, m))
                    wa = aW2(S, m)
                if m == 0: T.need_lds(('X', it, e, j + n))
                a = acc(n, m); x = aX(e, j + n)
                P.I(f"v_mfma_f32_16x16x32_bf16 v[{a}:{a+3}], a[{wa}:{wa+3}], a[{x}:{x+3}], v[{a}:{a+3}]")
                for f in fill[pp]: f()
            if s in (3, 10):
                T.all_lds()
                if s == 3: T.need_vm(*[('X', it, 1, k) for k in range(9)])
                else: T.need_vm(*[('X', it + 1, 0, k) for k in range(9)])
                P.I("s_barrier")
                if s == 10 and not K1:
                    P.I(f"v_add_u32 v{vXr[0]}, s{sDelta}, v{vXr[0]}\nv_add_u32 v{vXr[1]}, s{sDelta}, v{vXr[1]}\ns_sub_u32 s{sDelta}, 0, s{sDelta}")
    if not K1:
        P.I(f"s_add_u32 s63, s{sXlds}, {2*XBUF}\ns_xor_b32 s63, s63, s{sXlds}")
    st0 = (list(T.vq), list(T.lq), set(T.done))
    P.on = False
    T.start_record(); body(0); body(1)
    T.start_record(); body(2); rec = list(T.rec)
    T.vq, T.lq, T.done = list(st0[0]), list(st0[1]), set(st0[2])
    P.on = True
    ST.stamp(0)
    P.L(f"{name}_loop")
    T.start_replay(rec); body(0)
    P.on = False
    for it in range(1, 4):
        T.start_replay(rec); body(it)
    P.on = True
    P.I(f"s_cmp_lt_u32 s{sIt}, 4\ns_cbranch_scc1 {name}_loop")
    if pdbg: P.I("s_memtime s[100:101]")
    else: ST.stamp(1)
    P.I("s_waitcnt vmcnt(0) lgkmcnt(0)\ns_barrier")
    NT = 2 * nD
    RS = 3 * NT * 1024
    vA, vT, vR = 20, 21, 22
    P.I(f"v_lshlrev_b32 v{vA}, 4, v{vLane}\nv_add_u32 v{vT}, 0x10000, v{vA}")
    P.I(f"s_mul_i32 s41, s{sW_}, {RS}\nv_add_u32 v{vR}, s41, v{vA}")
    OWN = 32
    for w in range(4):
        P.I(f"s_cmp_lg_u32 s{sW_}, {w}\ns_cbranch_scc1 {name}_red{w}")
        for w2 in range(4):
            if w2 == w: continue
            idx = (w ^ w2) - 1
            for nn in range(2):
                for m in range(nD):
                    a = acc(2 * w2 + nn, m)
                    off = w2 * RS + idx * NT * 1024 + (nn * nD + m) * 1024
                    if off < 65536: P.I(f"ds_write_b128 v{vA}, v[{a}:{a+3}] offset:{off}")
                    else: P.I(f"ds_write_b128 v{vT}, v[{a}:{a+3}] offset:{off-65536}")
        for nn in range(2):
            for m in range(nD):
                a = acc(2 * w + nn, m)
                for r in range(4): P.I(f"v_mov_b32 v{OWN + (nn*nD+m)*4 + r}, v{a+r}")
        P.L(f"{name}_red{w}")
    vC0, vC1, vOne = 24, 26, 28
    P.I(f"v_mov_b32 v{vC0}, {f32(C0)}\nv_mov_b32 v{vC0+1}, {f32(C0)}\nv_mov_b32 v{vC1}, {f32(C1)}\nv_mov_b32 v{vC1+1}, {f32(C1)}")
    P.I(f"v_mov_b32 v{vOne}, 1.0\nv_mov_b32 v{vOne+1}, 1.0")
    vTw = [4, 5, 6, 7]; vHs = 8
    RB = 32 * nD
    xm = 7 if K1 else 3
    P.I(f"v_and_b32 v10, 15, v{vLane}\nv_lshrrev_b32 v11, 4, v{vLane}\nv_and_b32 v12, {xm}, v10\nv_lshlrev_b32 v12, 1, v12")
    P.I(f"v_mul_u32_u24 v13, {RB}, v10\nv_add_u32 v13, s41, v13")
    for m in range(nD):
        P.I(f"v_add_u32 v14, {4*m}, v11\nv_xor_b32 v14, v14, v12\nv_lshl_add_u32 v{vTw[m]}, v14, 3, v13")
    if K1:
        P.I(f"v_lshrrev_b32 v10, 3, v{vLane}\nv_and_b32 v11, 7, v{vLane}\nv_xor_b32 v11, v11, v10\nv_lshlrev_b32 v11, 4, v11")
        P.I(f"v_lshl_add_u32 v{vHs}, v10, 13, v11")
    else:
        P.I(f"v_lshrrev_b32 v10, 2, v{vLane}\nv_xor_b32 v11, v10, v{vLane}\nv_and_b32 v11, 3, v11\nv_lshlrev_b32 v11, 4, v11")
        P.I(f"v_lshl_add_u32 v{vHs}, v10, 13, v11")
    P.I("s_waitcnt lgkmcnt(0)\ns_barrier")
    PT = 128
    NR = NT * 4
    for idx in range(3):
        for t in range(NT):
            r = PT + idx * NR + t * 4
            P.I(f"ds_read_b128 v[{r}:{r+3}], v{vR} offset:{idx*NT*1024 + t*1024}")
    P.I(f"s_waitcnt lgkmcnt({min(15, 2*NT)})")
    for i in range(NR // 2):
        P.I(f"v_pk_add_f32 v[{OWN+2*i}:{OWN+2*i+1}], v[{OWN+2*i}:{OWN+2*i+1}], v[{PT+2*i}:{PT+2*i+1}]")
    P.I("s_waitcnt lgkmcnt(0)")
    for i in range(NR // 2): P.I(f"v_pk_add_f32 v[{PT+NR+2*i}:{PT+NR+2*i+1}], v[{PT+NR+2*i}:{PT+NR+2*i+1}], v[{PT+2*NR+2*i}:{PT+2*NR+2*i+1}]")
    for i in range(NR // 2): P.I(f"v_pk_add_f32 v[{OWN+2*i}:{OWN+2*i+1}], v[{OWN+2*i}:{OWN+2*i+1}], v[{PT+NR+2*i}:{PT+NR+2*i+1}]")
    TMP = 64
    for g in range(NR // 16):
        gelu_pairs(P, [OWN + 16*g + 2*i for i in range(8)], [TMP + 16*g + 2*i for i in range(8)], vC0, vC1, vOne)
    PK = 96
    for t in range(NT):
        P.I(f"v_cvt_pk_bf16_f32 v{PK+2*t}, v{OWN+4*t}, v{OWN+4*t+1}\nv_cvt_pk_bf16_f32 v{PK+2*t+1}, v{OWN+4*t+2}, v{OWN+4*t+3}")
    for t in range(NT):
        nn, m = t // nD, t % nD
        P.I(f"ds_write_b64 v{vTw[m]}, v[{PK+2*t}:{PK+2*t+1}] offset:{nn*16*RB}")
    P.I("s_waitcnt lgkmcnt(0)")
    NS = nD
    for i in range(NS): P.I(f"ds_read_b128 v[{TMP+4*i}:{TMP+4*i+3}], v{vR} offset:{i*1024}")
    P.I(f"s_lshl_b32 s42, s{sW_}, 1\ns_add_u32 s42, s42, s{sT0}\ns_lshl_b32 s42, s42, 10\ns_add_u32 s42, s42, s{sD0}")
    for i in range(NS):
        off = ((i >> 1) + 64 * (i & 1)) * 1024 if K1 else i * 1024
        P.I(f"s_add_u32 s{sT}, s42, {off}")
        P.I(f"s_waitcnt lgkmcnt({NS-1-i})")
        P.I(f"buffer_store_dwordx4 v[{TMP+4*i}:{TMP+4*i+3}], v{vHs}, s[{sSRDH}:{sSRDH+3}], s{sT} offen {oflav}")
    if not pdbg: ST.stamp()
    P.I("s_waitcnt vmcnt(0)")
    if not pdbg: ST.stamp()
    ST.flush(sWs, sW_)
    P.L(f"{name}_end")
    P.I("s_endpgm")

def kernel_desc(name, vgpr, accum, sgpr=102):
    return f""".p2align 6
.amdhsa_kernel {name}
  .amdhsa_next_free_vgpr {vgpr}
  .amdhsa_next_free_sgpr {sgpr}
  .amdhsa_accum_offset {accum}
  .amdhsa_group_segment_fixed_size 0
  .amdhsa_kernarg_size 80
  .amdhsa_user_sgpr_count 2
  .amdhsa_user_sgpr_kernarg_segment_ptr 1
  .amdhsa_system_sgpr_workgroup_id_x 1
  .amdhsa_float_denorm_mode_32 3
.end_amdhsa_kernel
"""
```

```python
from asmlib import *
from conv import *

CC = 2.0 * math.log2(math.e)
WS_CA = WS_EA
WS_CB = WS_EB

def gen_proj(P, name="proj_kernel", stamps=False, kidx=2):
    ST = Stamps(P, stamps, kidx)
    vLane = 2
    sWs, sW_ = 20, 28
    sSRDA, sSRDW, sSRDO = 8, 12, 16
    P.raw(f".globl {name}\n.p2align 8\n.type {name},@function\n{name}:")
    P.I("s_cmp_ge_u32 s2, 264"); P.I(f"s_cbranch_scc1 {name}_end")
    ST.stamp()
    P.I(f"s_load_dwordx2 s[{sWs}:{sWs+1}], s[0:1], 72\ns_load_dwordx2 s[4:5], s[0:1], 24")
    P.I(f"v_lshrrev_b32 v1, 6, v0\nv_and_b32 v{vLane}, 63, v0")
    P.I("s_and_b32 s41, s2, 7\ns_lshr_b32 s42, s2, 3")
    P.I(f"v_readfirstlane_b32 s{sW_}, v1")
    P.I("s_and_b32 s43, s42, 7\ns_lshr_b32 s44, s42, 3\ns_lshl_b32 s45, s41, 2\ns_add_u32 s44, s44, s45")
    P.I("s_cmp_ge_u32 s2, 256\ns_cselect_b32 s43, s41, s43\ns_cselect_b32 s44, 0, s44\ns_cselect_b32 s46, 1, 0")
    P.I("s_waitcnt lgkmcnt(0)")
    P.I(f"s_add_u32 s48, s{sWs}, {WS_F}\ns_addc_u32 s49, s{sWs+1}, 0")
    P.I(f"s_cmp_eq_u32 s46, 1\ns_cselect_b32 s{sSRDA}, s4, s48\ns_cselect_b32 s{sSRDA+1}, s5, s49\ns_mov_b32 s{sSRDA+2}, 2048000\ns_cselect_b32 s{sSRDA+2}, 16384, s{sSRDA+2}\ns_mov_b32 s{sSRDA+3}, 0x20000")
    P.I(f"s_mov_b32 s47, {WS_WF}\ns_cselect_b32 s47, {WS_WG}, s47")
    P.I(f"s_lshl_b32 s48, s43, 2\ns_add_u32 s48, s48, s{sW_}\ns_lshl_b32 s48, s48, 14\ns_add_u32 s47, s47, s48")
    P.I(f"s_add_u32 s{sSRDW}, s{sWs}, s47\ns_addc_u32 s{sSRDW+1}, s{sWs+1}, 0\ns_mov_b32 s{sSRDW+2}, 16384\ns_mov_b32 s{sSRDW+3}, 0x20000")
    P.I(f"s_cmp_eq_u32 s46, 1\ns_mov_b32 s47, {WS_CA}\ns_mov_b32 s{sSRDO+2}, 4096000\ns_cselect_b32 s47, {WS_CB}, s47\ns_cselect_b32 s{sSRDO+2}, 32768, s{sSRDO+2}")
    P.I(f"s_add_u32 s{sSRDO}, s{sWs}, s47\ns_addc_u32 s{sSRDO+1}, s{sWs+1}, 0\ns_mov_b32 s{sSRDO+3}, 0x20000")
    vP = [4 + i for i in range(8)]
    P.I(f"v_lshlrev_b32 v3, 4, v{vLane}")
    for q in range(8): P.I(f"v_xor_b32 v{vP[q]}, {32*q}, v3")
    P.I(f"s_lshl_b32 s48, s44, 6\ns_lshl_b32 s49, s{sW_}, 4\ns_add_u32 s48, s48, s49\ns_lshl_b32 s48, s48, 10")
    P.I(f"s_lshl_b32 s50, s{sW_}, 14")
    for k in range(16):
        P.I(f"s_add_u32 m0, s50, {k*1024}\ns_add_u32 s36, s48, {k*1024}")
        P.I(f"buffer_load_dwordx4 v{vP[k&7]}, s[{sSRDA}:{sSRDA+3}], s36 offen lds")
    for ks in range(16):
        if ks and ks % 4 == 0: P.I(f"s_mov_b32 s36, {ks*1024}")
        so = "s36" if ks >= 4 else "0"
        P.I(f"buffer_load_dwordx4 a[{4*ks}:{4*ks+3}], v3, s[{sSRDW}:{sSRDW+3}], {so} offen offset:{(ks&3)*1024}")
    vB = [12, 13, 14, 15]
    P.I(f"v_and_b32 v16, 15, v{vLane}\nv_lshrrev_b32 v17, 4, v{vLane}\nv_and_b32 v18, 7, v16\nv_lshlrev_b32 v18, 1, v18\nv_lshlrev_b32 v19, 10, v16")
    for q in range(4):
        P.I(f"v_add_u32 v20, {4*q}, v17\nv_xor_b32 v20, v20, v18\nv_lshl_add_u32 v{vB[q]}, v20, 4, v19")
    vO = 21
    P.I(f"v_lshlrev_b32 v{vO}, 11, v16\nv_lshl_add_u32 v{vO}, v17, 4, v{vO}")
    P.I(f"s_lshl_b32 s51, s44, 17\ns_lshl_b32 s52, s43, 8\ns_add_u32 s51, s51, s52\ns_lshl_b32 s52, s{sW_}, 6\ns_add_u32 s51, s51, s52")
    ACC = 32
    for i in range(16): P.I(f"v_mov_b32 v{ACC+i}, 0")
    P.I(f"v_mov_b32 v22, {f32(CC)}")
    ST.stamp(0)
    P.I("s_waitcnt vmcnt(16)\ns_barrier")
    RING = 64
    T = Tracker(P)
    def rd(ks, n):
        r = RING + ((ks * 4 + n) % 16) * 4
        P.I(f"ds_read_b128 v[{r}:{r+3}], v{vB[ks&3]} offset:{(ks>>2)*256 + n*16384}")
        T.lds((ks, n))
    for ks in range(3):
        for n in range(4): rd(ks, n)
    for ks in range(16):
        P.I(f"s_waitcnt vmcnt({15-ks})")
        for n in range(4):
            T.need_lds((ks, n))
            r = RING + ((ks * 4 + n) % 16) * 4
            P.I(f"v_mfma_f32_16x16x32_bf16 v[{ACC+4*n}:{ACC+4*n+3}], a[{4*ks}:{4*ks+3}], v[{r}:{r+3}], v[{ACC+4*n}:{ACC+4*n+3}]")
            if ks + 3 < 16: rd(ks + 3, n)
    ST.stamp(1)
    P.I("s_nop 7\ns_nop 1")
    for i in range(16): P.I(f"v_mul_f32 v{ACC+i}, v22, v{ACC+i}")
    for n in range(4):
        P.I(f"s_add_u32 s36, s51, {n*16*2048}")
        P.I(f"buffer_store_dwordx4 v[{ACC+4*n}:{ACC+4*n+3}], v{vO}, s[{sSRDO}:{sSRDO+3}], s36 offen")
    ST.stamp()
    P.I("s_waitcnt vmcnt(0)")
    ST.stamp()
    ST.flush(sWs, sW_)
    P.L(f"{name}_end")
    P.I("s_endpgm")


def gen_joint(P, name="joint_kernel", stamps=False, kidx=3, oflav="sc1", LA=6, budget=24):
    ST = Stamps(P, stamps, kidx)
    vLane = 2
    sWs, sW_ = 20, 28
    sCA, sCB, sWO, sOUT = 8, 12, 16, 24
    sRow, sOut0 = 30, 31
    vL32, vL16 = 3, 4
    vJw = list(range(8, 16)); vJr = list(range(16, 24)); vOw = [24, 25, 26, 27]; vOr, vOs = 28, 29
    E = 32
    CAR = [96, 104]
    ACC = [112, 144]
    RING = 176
    X = [208, 216]
    PK = [224, 228]
    OP = 232
    P.raw(f".globl {name}\n.p2align 8\n.type {name},@function\n{name}:")
    P.I("s_and_b32 s41, s2, 7\ns_lshr_b32 s42, s2, 3\ns_lshr_b32 s43, s41, 1\ns_lshl_b32 s44, s42, 2\ns_add_u32 s43, s43, s44")
    P.I(f"s_cmp_ge_u32 s43, 126\ns_cbranch_scc1 {name}_end")
    ST.stamp()
    P.I(f"s_load_dwordx2 s[{sWs}:{sWs+1}], s[0:1], 72\ns_load_dwordx2 s[4:5], s[0:1], 56")
    P.I(f"v_lshrrev_b32 v1, 6, v0\nv_and_b32 v{vLane}, 63, v0")
    P.I("s_and_b32 s45, s41, 1")
    P.I(f"v_readfirstlane_b32 s{sW_}, v1")
    P.I("s_cmp_ge_u32 s43, 63\ns_cselect_b32 s46, 1, 0\ns_cselect_b32 s47, 63, 0\ns_sub_u32 s43, s43, s47\ns_lshl_b32 s43, s43, 4")
    P.I(f"v_lshlrev_b32 v{vL32}, 5, v{vLane}\nv_lshlrev_b32 v{vL16}, 4, v{vLane}")
    P.I("s_waitcnt lgkmcnt(0)")
    P.I(f"s_mul_i32 s47, s46, 2048000\ns_add_u32 s47, s47, {WS_CA}\ns_add_u32 s{sCA}, s{sWs}, s47\ns_addc_u32 s{sCA+1}, s{sWs+1}, 0\ns_mov_b32 s{sCA+2}, 2048000\ns_mov_b32 s{sCA+3}, 0x20000")
    P.I(f"s_lshl_b32 s47, s46, 14\ns_add_u32 s47, s47, {WS_CB}\ns_add_u32 s{sCB}, s{sWs}, s47\ns_addc_u32 s{sCB+1}, s{sWs+1}, 0\ns_mov_b32 s{sCB+2}, 16384\ns_mov_b32 s{sCB+3}, 0x20000")
    P.I(f"s_lshl_b32 s47, s45, 2\ns_add_u32 s47, s47, s{sW_}\ns_lshl_b32 s47, s47, 16\ns_add_u32 s47, s47, {WS_WO}")
    P.I(f"s_add_u32 s{sWO}, s{sWs}, s47\ns_addc_u32 s{sWO+1}, s{sWs+1}, 0\ns_mov_b32 s{sWO+2}, 65536\ns_mov_b32 s{sWO+3}, 0x20000")
    P.I(f"s_mul_i32 s47, s46, 8192000\ns_add_u32 s{sOUT}, s4, s47\ns_addc_u32 s{sOUT+1}, s5, 0\ns_mov_b32 s{sOUT+2}, 8192000\ns_mov_b32 s{sOUT+3}, 0x20000")
    P.I(f"s_add_u32 s{sRow}, s43, s{sW_}\ns_lshl_b32 s{sRow}, s{sRow}, 11")
    P.I(f"s_lshl_b32 s{sOut0}, s43, 13\ns_lshl_b32 s47, s45, 9\ns_add_u32 s{sOut0}, s{sOut0}, s47\ns_lshl_b32 s47, s{sW_}, 7\ns_add_u32 s{sOut0}, s{sOut0}, s47")
    T = Tracker(P)
    def ca_load(r, dst, tag='CA'):
        P.I(f"s_add_u32 s36, s{sRow}, {r*4*2048}")
        for h in range(2):
            P.I(f"buffer_load_dwordx4 v[{dst+4*h}:{dst+4*h+3}], v{vL32}, s[{sCA}:{sCA+3}], s36 offen offset:{16*h}")
            T.vm((tag, r, h))
    for u in range(8):
        if u % 2 == 0: P.I(f"s_mov_b32 s36, {u*2048}")
        for h in range(2):
            P.I(f"buffer_load_dwordx4 v[{E+8*u+4*h}:{E+8*u+4*h+3}], v{vL32}, s[{sCB}:{sCB+3}], s36 offen offset:{(u&1)*2048 + 16*h}")
            T.vm(('CB', u, h))
    ca_load(0, CAR[0]); ca_load(1, CAR[1])
    ca_load(2, ACC[1], 'CK'); ca_load(3, ACC[1] + 8, 'CK')
    for f in range(64):
        if f % 4 == 0: P.I(f"s_mov_b32 s36, {f*1024}")
        P.I(f"buffer_load_dwordx4 a[{4*f}:{4*f+3}], v{vL16}, s[{sWO}:{sWO+3}], s36 offen offset:{(f&3)*1024}")
        T.vm(('W', f))
    P.I(f"s_and_b32 s47, s{sW_}, 1\ns_lshl_b32 s47, s47, 3\ns_lshl_b32 s48, s{sW_}, 13")
    for u in range(8):
        P.I(f"s_add_u32 s49, s47, {u}\nv_xor_b32 v5, s49, v{vLane}\nv_lshlrev_b32 v5, 4, v5\ns_add_u32 s49, s48, {u*1024}\nv_add_u32 v{vJw[u]}, s49, v5")
    P.I(f"v_and_b32 v5, 31, v{vLane}\nv_lshrrev_b32 v6, 5, v{vLane}\nv_and_b32 v7, 15, v5\nv_lshlrev_b32 v30, 10, v5")
    for q in range(8):
        P.I(f"v_add_u32 v31, {2*q}, v6\nv_xor_b32 v31, v31, v7\nv_lshl_add_u32 v{vJr[q]}, v31, 4, v30")
    P.I(f"s_lshl_b32 s49, s{sW_}, 12\ns_add_u32 s49, s49, 65536")
    P.I(f"v_and_b32 v7, 7, v5\nv_xor_b32 v7, v7, v6\nv_lshlrev_b32 v7, 4, v7\nv_lshl_add_u32 v7, v5, 7, v7\nv_add_u32 v7, s49, v7")
    for i in range(4): P.I(f"v_xor_b32 v{vOw[i]}, {32*i}, v7")
    P.I(f"v_add_u32 v{vOr}, s49, v{vL16}")
    P.I(f"v_lshrrev_b32 v5, 3, v{vLane}\nv_xor_b32 v6, v5, v{vLane}\nv_and_b32 v6, 7, v6\nv_lshlrev_b32 v6, 4, v6\nv_lshl_add_u32 v{vOs}, v5, 10, v6")
    T.need_vm(*[('CB', u, h) for u in range(8) for h in range(2)], *[('CA', r, h) for r in range(2) for h in range(2)], *[('CK', r, h) for r in (2, 3) for h in range(2)])
    P.I("v_mov_b32 v5, 0")
    chk = [E + i for i in range(64)] + [CAR[0] + i for i in range(16)] + [ACC[1] + i for i in range(16)]
    for i in range(0, len(chk), 2): P.I(f"v_max3_f32 v5, abs(v{chk[i]}), abs(v{chk[i+1]}), v5")
    P.I(f"v_cmp_lt_f32 vcc, {f32(60.0)}, v5\ns_nop 4\ns_cbranch_vccnz {name}_slow")
    st0 = (list(T.vq), list(T.lq), set(T.done))

    def variant(slow):
        T.vq, T.lq, T.done = list(st0[0]), list(st0[1]), set(st0[2])
        T.start_record()
        def prod_ops(r):
            ops = []
            ca = CAR[r & 1]
            def need_ca():
                T.need_vm(('CA', r, 0), ('CA', r, 1))
            ops.append((0, need_ca))
            if not slow:
                for i in range(8): ops.append((8, lambda i=i: P.I(f"v_exp_f32 v{ca+i}, v{ca+i}")))
            for u in range(8):
                x = X[u & 1]; pk = PK[u & 1]
                if not slow:
                    for i in range(8): ops.append((4, lambda i=i, x=x, u=u: P.I(f"v_fma_f32 v{x+i}, v{ca+i}, v{E+8*u+i}, 1.0")))
                else:
                    for i in range(8): ops.append((4, lambda i=i, x=x, u=u: P.I(f"v_add_f32 v{x+i}, v{ca+i}, v{E+8*u+i}")))
                    for i in range(8): ops.append((8, lambda i=i, x=x: P.I(f"v_exp_f32 v{x+i}, v{x+i}")))
                    for i in range(8): ops.append((4, lambda i=i, x=x: P.I(f"v_add_f32 v{x+i}, 1.0, v{x+i}")))
                for i in range(8): ops.append((8, lambda i=i, x=x: P.I(f"v_rcp_f32 v{x+i}, v{x+i}")))
                for i in range(8): ops.append((4, lambda i=i, x=x: P.I(f"v_fma_f32 v{x+i}, v{x+i}, -2.0, 1.0")))
                for k in range(4): ops.append((4, lambda k=k, x=x, pk=pk: P.I(f"v_cvt_pk_bf16_f32 v{pk+k}, v{x+2*k}, v{x+2*k+1}")))
                def wr(u=u, pk=pk):
                    P.I(f"ds_write_b128 v{vJw[u]}, v[{pk}:{pk+3}] offset:{(r&1)*32768}")
                    T.lds(('JW', r, u))
                ops.append((8, wr))
            return ops
        def epi_ops(r):
            ops = []
            a = ACC[r & 1]
            for vt in range(2):
                for jj in range(4):
                    for k in range(2):
                        d = OP + (vt * 2 + (jj >> 1)) * 4 + (jj & 1) * 2 + k
                        src = a + vt * 16 + jj * 4 + 2 * k
                        ops.append((4, lambda d=d, src=src: P.I(f"v_cvt_pk_bf16_f32 v{d}, v{src}, v{src+1}")))
            ops.append((4, lambda: P.I("s_nop 1")))
            for g in range(4):
                b = OP + 4 * g
                ops.append((4, lambda b=b: P.I(f"v_permlane32_swap_b32 v{b}, v{b+2}")))
                ops.append((4, lambda b=b: P.I(f"v_permlane32_swap_b32 v{b+1}, v{b+3}")))
            for g in range(4):
                def wr(g=g):
                    P.I(f"ds_write_b128 v{vOw[g]}, v[{OP+4*g}:{OP+4*g+3}]"); T.lds(('OW', r, g))
                ops.append((8, wr))
            for i in range(4):
                def rd(i=i):
                    if i == 0: T.need_lds(*[('OW', r, g) for g in range(4)])
                    P.I(f"ds_read_b128 v[{OP+4*i}:{OP+4*i+3}], v{vOr} offset:{i*1024}"); T.lds(('OR', r, i))
                ops.append((4, rd))
            ops.append((40, lambda: None))
            for i in range(4):
                def st(i=i):
                    T.need_lds(('OR', r, i))
                    P.I(f"s_add_u32 s36, s{sOut0}, {(r*32 + 8*i)*1024}")
                    P.I(f"buffer_store_dwordx4 v[{OP+4*i}:{OP+4*i+3}], v{vOs}, s[{sOUT}:{sOUT+3}], s36 offen {oflav}")
                    T.vm(('OS', r, i))
                ops.append((8, st))
            return ops
        def bread(G):
            r, s = G >> 5, G & 31
            g = RING + (G % 8) * 4
            P.I(f"ds_read_b128 v[{g}:{g+3}], v{vJr[s&7]} offset:{(r&1)*32768 + (s>>3)*256}")
            T.lds(('B', G))
        if not slow:
            for i in range(64): P.I(f"v_exp_f32 v{E+i}, v{E+i}")
        for c, f in prod_ops(0): f()
        for i in range(32): P.I(f"v_mov_b32 v{ACC[0]+i}, 0")
        T.all_lds(); P.I("s_barrier")
        for G in range(LA): bread(G)
        ST2 = None
        V = [(4, lambda: ca_load(2, CAR[0]))] + prod_ops(1); Eq = []
        if not slow: ST.stamp(0)
        BAR = 32 - LA
        credit = 0
        for G in range(128):
            r, s = G >> 5, G & 31
            if s == BAR and r < 3:
                while V:
                    c, f = V.pop(0); f()
                T.all_lds(); P.I("s_barrier")
                if r + 2 <= 3:
                    V = ([(4, lambda r=r: ca_load(r + 3, CAR[(r + 3) & 1]))] if r + 3 <= 3 else []) + prod_ops(r + 2)
                credit = 0
            if s == 4 and r >= 1:
                Eq = epi_ops(r - 1)
            if s == 0 and r >= 1:
                pass
            for vt in range(2):
                f = s * 2 + vt
                if r == 0: T.need_vm(('W', f))
                if vt == 0: T.need_lds(('B', G))
                a = ACC[r & 1] + 16 * vt
                g = RING + (G % 8) * 4
                if s == 0 and r >= 1:
                    P.I(f"v_mfma_f32_32x32x16_bf16 v[{a}:{a+15}], a[{4*f}:{4*f+3}], v[{g}:{g+3}], 0")
                else:
                    P.I(f"v_mfma_f32_32x32x16_bf16 v[{a}:{a+15}], a[{4*f}:{4*f+3}], v[{g}:{g+3}], v[{a}:{a+15}]")
                credit += budget
                if vt == 0 and G + LA < 128 and not (r < 3 and s + LA >= 32 and s < BAR):
                    bread(G + LA); credit -= 4
                while credit > 0 and (Eq or V):
                    q = Eq if Eq else V
                    c, fn = q.pop(0); fn(); credit -= c
                if not (Eq or V): credit = min(credit, budget)
        assert not V
        while Eq:
            c, f = Eq.pop(0); f()
        if not slow: ST.stamp(1)
        P.I("s_nop 7\ns_nop 7")
        for c, f in epi_ops(3): f()
        if not slow: ST.stamp()
        P.I("s_waitcnt vmcnt(0)")
        if not slow: ST.stamp()
    variant(False)
    ST.flush(sWs, sW_)
    P.I("s_endpgm")
    P.L(f"{name}_slow")
    variant(True)
    P.L(f"{name}_end")
    P.I("s_endpgm")
```

```python
from asmlib import *
import math

C0 = -2.0 * math.sqrt(2.0 / math.pi) * math.log2(math.e)
C1 = C0 * 0.044715
import struct
def f32(x): return "0x%08x" % struct.unpack("<I", struct.pack("<f", x))[0]

WS_H   = 0x0000000
WS_W2  = 0x0400000
WS_WF  = 0x0C00000
WS_WG  = 0x0C80000
WS_WO  = 0x0D00000
WS_F   = 0x0E00000
WS_EA  = 0x1000000
WS_EB  = 0x1400000
WS_FLAG= 0x1410000
OOB = 0x40000000

XB = [0, 36864]
WF = 73728
SCR = 155648

def tap_of(s): return 2 * s if s < 8 else 2 * (s - 8) + 1

def x_slots(nslots=18):
    U = 4; per = 15 * U
    iv = {}
    load_step = {}
    for sg in range(15):
        load_step[(0, sg)] = (11 + sg // 2) if sg < 8 else min((sg - 8) // 2, 3)
        last = min(sg, 7)
        iv[(0, sg)] = (load_step[(0, sg)] * U, last * U + U - 1)
    for sg in range(14):
        load_step[(1, sg)] = (4 + sg // 2) if sg < 8 else 8 + (sg - 8) // 2
        last = 8 + min(sg, 6)
        iv[(1, sg)] = (load_step[(1, sg)] * U, last * U + U - 1)
    col = circ_color(iv, per, nslots)
    return col, load_step

def gelu_pairs(p, regs, tmp, vC0, vC1, vOne):
    n = len(regs)
    for i in range(n): p.I(f"v_pk_mul_f32 v[{tmp[i]}:{tmp[i]+1}], v[{regs[i]}:{regs[i]+1}], v[{regs[i]}:{regs[i]+1}]")
    for i in range(n): p.I(f"v_pk_fma_f32 v[{tmp[i]}:{tmp[i]+1}], v[{tmp[i]}:{tmp[i]+1}], v[{vC1}:{vC1+1}], v[{vC0}:{vC0+1}]")
    for i in range(n): p.I(f"v_pk_mul_f32 v[{tmp[i]}:{tmp[i]+1}], v[{tmp[i]}:{tmp[i]+1}], v[{regs[i]}:{regs[i]+1}]")
    for i in range(n):
        p.I(f"v_exp_f32 v{tmp[i]}, v{tmp[i]}"); p.I(f"v_exp_f32 v{tmp[i]+1}, v{tmp[i]+1}")
    for i in range(n): p.I(f"v_pk_add_f32 v[{tmp[i]}:{tmp[i]+1}], v[{tmp[i]}:{tmp[i]+1}], v[{vOne}:{vOne+1}]")
    for i in range(n):
        p.I(f"v_rcp_f32 v{tmp[i]}, v{tmp[i]}"); p.I(f"v_rcp_f32 v{tmp[i]+1}, v{tmp[i]+1}")
    for i in range(n): p.I(f"v_pk_mul_f32 v[{regs[i]}:{regs[i]+1}], v[{regs[i]}:{regs[i]+1}], v[{tmp[i]}:{tmp[i]+1}]")

WS_STAMP = 0x2000000
class Stamps:
    def __init__(self, P, on, kidx): self.P, self.on, self.k, self.n = P, on, kidx, 0
    def stamp(self, cyc=None):
        if not self.on: return
        i = self.n; self.n += 1
        assert i < 5
        self.P.I(f"s_memrealtime s[{88+2*i}:{89+2*i}]")
        if cyc is not None: self.P.I(f"s_memtime s[{98+2*cyc}:{99+2*cyc}]")
    def flush(self, sWs, sWave):
        if not self.on: return
        P = self.P
        P.I("s_waitcnt lgkmcnt(0)")
        P.I(f"s_add_u32 s56, s{sWs}, {WS_STAMP + self.k*131072}\ns_addc_u32 s57, s{sWs+1}, 0\ns_mov_b32 s58, 131072\ns_mov_b32 s59, 0x20000")
        P.I(f"s_lshl_b32 s60, s2, 8\ns_lshl_b32 s61, s{sWave}, 6\ns_add_u32 s60, s60, s61")
        P.I("s_mov_b64 exec, 1\nv_mov_b32 v1, s60")
        for i in range(self.n):
            P.I(f"v_mov_b32 v2, s{88+2*i}\ns_nop 0")
            P.I(f"buffer_store_dword v2, v1, s[56:59], 0 offen offset:{4*i}\ns_nop 1")
        P.I(f"s_sub_u32 s98, s100, s98\nv_mov_b32 v2, s98\ns_nop 0\nbuffer_store_dword v2, v1, s[56:59], 0 offen offset:32")
        P.I(f"v_mov_b32 v2, {self.n}\ns_nop 0\nbuffer_store_dword v2, v1, s[56:59], 0 offen offset:36")
        P.I("s_waitcnt vmcnt(0)")

def gen_helper(P, name, sWs, sOOB, sflav, hskip=()):
    vLane = 2
    vW = [4, 5, 6, 7]; vWr = [8, 9, 10, 11]; vLin, vPo, vPW, vPX, vDum, vLin8 = 12, 13, 14, 15, 16, 17
    QS, QD, QW, QX = 24, 52, 12, 8
    sSrc, sDst, sT, sHi = 41, 42, 36, 43
    P.L(f"{name}_helper")
    P.I("s_load_dwordx2 s[44:45], s[0:1], 16\ns_load_dwordx4 s[48:51], s[0:1], 32\ns_load_dwordx2 s[46:47], s[0:1], 48")
    P.I(f"s_lshl_b32 s56, s2, 6\nv_add_u32 v20, s56, v{vLane}")
    P.I(f"v_lshrrev_b32 v21, 10, v20\nv_lshlrev_b32 v21, 19, v21\nv_bfe_u32 v22, v20, 3, 7\nv_lshl_add_u32 v21, v22, 10, v21\nv_and_b32 v22, 7, v20\nv_lshl_add_u32 v{vPW}, v22, 7, v21")
    P.I(f"v_lshrrev_b32 v21, 1, v20\nv_lshlrev_b32 v21, 10, v21\nv_and_b32 v22, 1, v20\nv_lshl_add_u32 v{vPX}, v22, 7, v21")
    P.I(f"s_mov_b32 s{QX}, s4\ns_mov_b32 s{QX+1}, s5\ns_mov_b32 s{QX+2}, 8192000\ns_mov_b32 s{QX+3}, 0x20000")
    P.I(f"s_mov_b32 s{QW}, s6\ns_mov_b32 s{QW+1}, s7\ns_mov_b32 s{QW+2}, 7864320\ns_mov_b32 s{QW+3}, 0x20000")
    T = Tracker(P)
    def pf(cc):
        if 'pf' in hskip: return
        P.I(f"s_mov_b32 s{sT}, {cc*131072}\nbuffer_load_dword v{vDum}, v{vPW}, s[{QW}:{QW+3}], s{sT} offen"); T.vm(('PW', cc))
        P.I(f"s_mov_b32 s{sT}, {cc*256}\nbuffer_load_dword v{vDum}, v{vPX}, s[{QX}:{QX+3}], s{sT} offen"); T.vm(('PX', cc))
    pf(0)
    P.I(f"v_lshrrev_b32 v22, 3, v{vLane}\nv_and_b32 v23, 1, v22\nv_lshlrev_b32 v23, 3, v23\nv_bfe_u32 v24, v22, 1, 1\nv_lshl_add_u32 v23, v24, 2, v23")
    P.I(f"v_lshrrev_b32 v24, 2, v22\nv_lshl_add_u32 v23, v24, 4, v23\nv_lshlrev_b32 v23, 10, v23\nv_and_b32 v24, 7, v{vLane}")
    for k in range(4): P.I(f"v_xor_b32 v25, {2*k}, v24\nv_lshl_add_u32 v{vW[k]}, v25, 4, v23")
    P.I(f"v_lshrrev_b32 v3, 4, v{vLane}\nv_and_b32 v20, 15, v{vLane}\nv_lshrrev_b32 v22, 2, v20\nv_and_b32 v23, 3, v20")
    P.I(f"v_and_b32 v24, 1, v3\nv_lshrrev_b32 v25, 1, v3\nv_lshl_add_u32 v24, v25, 2, v24\nv_lshlrev_b32 v24, 7, v24")
    P.I(f"v_lshl_add_u32 v24, v22, 10, v24\nv_lshl_add_u32 v24, v23, 3, v24\nv_add_u32 v24, 98304, v24")
    for m in range(4): P.I(f"v_xor_b32 v25, {m}, v22\nv_lshl_add_u32 v{vWr[m]}, v25, 5, v24")
    P.I(f"v_lshlrev_b32 v{vLin}, 4, v{vLane}\nv_mov_b32 v{vLin8}, v{vLin}")
    P.I(f"v_lshrrev_b32 v21, 1, v3\nv_lshlrev_b32 v21, 11, v21\nv_and_b32 v24, 1, v3\nv_lshl_add_u32 v21, v24, 9, v21\nv_lshl_add_u32 v{vPo}, v20, 4, v21")
    P.I("s_waitcnt lgkmcnt(0)")
    P.I(f"s_mov_b32 s{QD}, s{sWs}\ns_mov_b32 s{QD+1}, s{sWs+1}\ns_mov_b32 s{QD+2}, {WS_F}\ns_mov_b32 s{QD+3}, 0x20000")
    if 'srcw1' in hskip: P.I("s_mov_b32 s44, s6\ns_mov_b32 s45, s7")
    P.I(f"s_mov_b32 s{QS}, s44\ns_mov_b32 s{QS+1}, s45\ns_mov_b32 s{QS+2}, 7864320\ns_mov_b32 s{QS+3}, 0x20000")
    P.I(f"s_lshr_b32 s{sHi}, s2, 7\ns_bfe_u32 s57, s2, 0x40003\ns_and_b32 s58, s2, 7")
    P.I(f"s_lshl_b32 s59, s{sHi}, 19\ns_lshl_b32 s60, s57, 15\ns_add_u32 s59, s59, s60\ns_lshl_b32 s60, s58, 7\ns_add_u32 s{sSrc}, s59, s60")
    P.I(f"s_lshl_b32 s60, s58, 3\ns_and_b32 s61, s57, 3\ns_add_u32 s60, s60, s61\ns_lshl_b32 s60, s60, 2\ns_lshr_b32 s61, s57, 2\ns_add_u32 s60, s60, s61")
    P.I(f"s_mul_i32 s60, s60, 15\ns_lshl_b32 s61, s{sHi}, 3\ns_add_u32 s60, s60, s61\ns_lshl_b32 s60, s60, 11\ns_add_u32 s{sDst}, s60, {WS_W2}")
    HB = 98304
    DO = [64 + 0] * 9
    DOk = lambda k: (60 + 4 * k) if k < 9 else 0
    def issue(k):
        if 'blk' in hskip: return
        DO = {k: [64, 68, 80, 84, 88, 92, 96, 28, 32][k]}
        b = k
        lab = f"{name}_h{k}"
        if k <= 6:
            P.I(f"s_mov_b32 s{DO[b]}, s{sDst}\ns_add_u32 s{DO[b]+1}, s{sDst}, 1024\ns_add_u32 s{DO[b]+2}, s{sDst}, 491520\ns_add_u32 s{DO[b]+3}, s{sDst}, {491520+1024}")
            P.I(f"s_mov_b32 s{sT}, s{sSrc}\ns_add_u32 s{sSrc}, s{sSrc}, 1048576\ns_add_u32 s{sDst}, s{sDst}, 2048")
        elif k == 7:
            P.I(f"s_cmp_ge_u32 s2, 128\ns_cbranch_scc1 {lab}a")
            P.I(f"s_mov_b32 s{DO[b]}, s{sDst}\ns_add_u32 s{DO[b]+1}, s{sDst}, 1024\ns_add_u32 s{DO[b]+2}, s{sDst}, 491520\ns_add_u32 s{DO[b]+3}, s{sDst}, {491520+1024}")
            P.I(f"s_mov_b32 s{sT}, s{sSrc}\ns_branch {lab}b")
            P.L(f"{lab}a")
            P.I(f"s_mov_b32 s{QS}, s48\ns_mov_b32 s{QS+1}, s49\ns_mov_b32 s{QS+2}, 524288")
            P.I(f"s_bfe_u32 s56, s2, 0x40003\ns_and_b32 s58, s2, 7\ns_lshl_b32 s59, s56, 15\ns_lshl_b32 s60, s58, 7\ns_add_u32 s{sT}, s59, s60")
            P.I(f"s_lshl_b32 s59, s58, 16\ns_lshl_b32 s60, s56, 10\ns_add_u32 s59, s59, s60\ns_add_u32 s{DO[b]}, s59, {WS_WF}")
            P.I(f"s_add_u32 s{DO[b]+1}, s{DO[b]}, 16384\ns_add_u32 s{DO[b]+2}, s{DO[b]}, 32768\ns_add_u32 s{DO[b]+3}, s{DO[b]}, 49152")
            P.L(f"{lab}b")
        else:
            P.I(f"s_bfe_u32 s56, s2, 0x40003\ns_and_b32 s58, s2, 7\ns_lshl_b32 s59, s56, 15\ns_lshl_b32 s60, s58, 7\ns_add_u32 s{sT}, s59, s60\ns_lshl_b32 s59, s58, 16")
            P.I(f"s_mov_b32 s{QS+2}, 524288\ns_cmp_ge_u32 s2, 128\ns_cbranch_scc1 {lab}a")
            P.I(f"s_mov_b32 s{QS}, s50\ns_mov_b32 s{QS+1}, s51\ns_lshl_b32 s60, s56, 10\ns_add_u32 s59, s59, s60\ns_add_u32 s{DO[b]}, s59, {WS_WG}")
            P.I(f"s_add_u32 s{DO[b]+1}, s{DO[b]}, 16384\ns_add_u32 s{DO[b]+2}, s{DO[b]}, 32768\ns_add_u32 s{DO[b]+3}, s{DO[b]}, 49152\ns_branch {lab}b")
            P.L(f"{lab}a")
            P.I(f"s_mov_b32 s{QS}, s46\ns_mov_b32 s{QS+1}, s47\ns_lshl_b32 s60, s56, 12\ns_add_u32 s59, s59, s60\ns_add_u32 s{DO[b]}, s59, {WS_WO}")
            P.I(f"s_add_u32 s{DO[b]+1}, s{DO[b]}, 256\ns_add_u32 s{DO[b]+2}, s{DO[b]}, 1024\ns_add_u32 s{DO[b]+3}, s{DO[b]}, 1280\nv_mov_b32 v{vLin8}, v{vPo}")
            P.L(f"{lab}b")
        P.I(f"s_mov_b32 m0, {HB + k*4096}\ns_nop 0")
        for kk in range(4):
            P.I(f"buffer_load_dwordx4 v{vW[kk]}, s[{QS}:{QS+3}], s{sT} offen offset:{kk*1024} lds"); T.vm(('D', k, kk))
    def process(ks):
        if 'blk' in hskip: return
        if 'noproc' in hskip: return
        T.need_vm(*[('D', k, kk) for k in ks for kk in range(4)])
        for k in ks:
            for m in range(4):
                for hh in range(2):
                    r = 32 + (k & 1) * 16 + 4 * m + 2 * hh
                    P.I(f"ds_read_b64_tr_b16 v[{r}:{r+1}], v{vWr[m]} offset:{k*4096 + hh*256}")
        P.I("s_waitcnt lgkmcnt(0)")
    def store(ks):
        if 'blk' in hskip or 'store' in hskip: return
        for k in ks:
            for m in range(4):
                r = 32 + (k & 1) * 16 + 4 * m
                d = [64, 68, 80, 84, 88, 92, 96, 28, 32][k]
                P.I(f"buffer_store_dwordx4 v[{r}:{r+3}], v{vPo if False else (vLin8 if k == 8 else vLin)}, s[{QD}:{QD+3}], s{d+m} offen {sflav}"); T.vm(('S', k, m))
    vPS, vPQ = 18, 19
    P.I(f"s_lshl_b32 s56, s2, 6\nv_add_u32 v20, s56, v{vLane}\nv_lshlrev_b32 v{vPS}, 7, v20")
    P.I(f"s_lshl_b32 s56, s2, 4\nv_and_b32 v20, 15, v{vLane}\nv_add_u32 v20, s56, v20\nv_lshlrev_b32 v{vPQ}, 7, v20")
    P.I(f"s_mov_b32 s72, s44\ns_mov_b32 s73, s45\ns_mov_b32 s74, 7864320\ns_mov_b32 s75, 0x20000")
    def ps(q):
        if 'pf' in hskip: return
        P.I(f"s_mov_b32 s{sT}, {q << 21}\nbuffer_load_dword v{vDum}, v{vPS}, s[72:75], s{sT} offen"); T.vm(('PS', q))
    def pq():
        if 'pf' in hskip: return
        for n_, lo in enumerate((48, 50, 46)):
            P.I(f"s_mov_b32 s76, s{lo}\ns_mov_b32 s77, s{lo+1}\ns_mov_b32 s78, 524288\ns_mov_b32 s79, 0x20000")
            P.I(f"buffer_load_dword v{vDum}, v{vPQ}, s[76:79], 0 offen"); T.vm(('PQ', n_))
    B = lambda: P.I("s_barrier")
    B()
    pf(1); B()
    B()
    pf(2); B()
    B()
    pf(3); B()
    B(); B(); B()
    for q in range(4): ps(q)
    pq()
    B()
    for k in range(9): issue(k)
    B()
    for k in range(9):
        process([k]); store([k])
    P.I("s_waitcnt vmcnt(0)\ns_endpgm")


def gen_conv(p, which, name, oflav="sc1", stamps=False, D2=8, pdbg=False, sflav="sc1", itdbg=False, helper=True, hskip=()):
    P = p
    K1 = which == 1
    ST = Stamps(P, stamps, which - 1)
    nD = 4 if K1 else 2
    NM = 8 * nD
    xcol, xload = x_slots()
    XBUF = 36864
    vLane = 2
    vXpat = [4, 5, 6, 7]; vK0 = [8, 9]; vXr = [10, 11]; vW = [12, 13, 14, 15]; vWr = [16, 17, 18, 19]
    vW2 = 12
    ACC = 40
    BLK = 8 * nD
    def acc(n, m): return ACC + (n * nD + m) * 4
    def aX(e, sg): return xcol[(e, sg)] * 4
    AW = 72
    def aW(m): return AW + 4 * m
    def aW2(S, m): return AW + ((S % 15) * 2 + m) * 4
    sSRDX, sSRDW, sSRDH = 8, 12, 16
    sWs = 20
    sW_, sWbase, sWnext, sXa, sXb, sXlds, sWlds, sIt, sT, sOOB = 28, 29, 30, 31, 32, 33, 34, 35, 36, 37
    sT0, sD0, sB, sDelta = 38, 39, 40, 62
    P.raw(f".globl {name}\n.p2align 8\n.type {name},@function\n{name}:")
    P.I("s_cmp_ge_u32 s2, 256"); P.I(f"s_cbranch_scc1 {name}_end")
    ST.stamp()
    if K1: P.I("s_load_dwordx4 s[4:7], s[0:1], 0")
    P.I(f"s_load_dwordx2 s[{sWs}:{sWs+1}], s[0:1], 72")
    P.I(f"v_lshrrev_b32 v1, 6, v0\nv_and_b32 v{vLane}, 63, v0")
    P.I(f"s_and_b32 s41, s2, 7\ns_lshr_b32 s42, s2, 3")
    P.I(f"v_readfirstlane_b32 s{sW_}, v1")
    if K1:
        P.I("s_and_b32 s43, s41, 1\ns_lshl_b32 s43, s43, 2\ns_and_b32 s44, s42, 3\ns_add_u32 s43, s43, s44")
        P.I("s_lshr_b32 s45, s41, 1\ns_lshl_b32 s45, s45, 3\ns_lshr_b32 s46, s42, 2\ns_add_u32 s45, s45, s46")
        P.I(f"s_lshr_b32 s{sB}, s45, 4\ns_and_b32 s45, s45, 15\ns_mul_i32 s{sT0}, s45, 125\ns_lshl_b32 s{sD0}, s43, 7")
    else:
        P.I("s_lshr_b32 s43, s41, 1\ns_lshl_b32 s43, s43, 2\ns_and_b32 s44, s42, 3\ns_add_u32 s43, s43, s44")
        P.I(f"s_and_b32 s{sB}, s41, 1\ns_lshr_b32 s45, s42, 2\ns_mul_i32 s{sT0}, s45, 125\ns_lshl_b32 s{sD0}, s43, 6")
    P.I(f"s_mov_b32 s{sOOB}, {OOB}")
    P.I("s_waitcnt lgkmcnt(0)")
    if K1 and helper:
        P.I(f"s_cmp_eq_u32 s{sW_}, 4\ns_cbranch_scc1 {name}_helper")
    if K1:
        P.I(f"s_mul_i32 s46, s{sB}, 4096000")
        P.I(f"s_add_u32 s{sSRDX}, s4, s46\ns_addc_u32 s{sSRDX+1}, s5, 0\ns_mov_b32 s{sSRDX+2}, 4096000\ns_mov_b32 s{sSRDX+3}, 0x20000")
        P.I(f"s_mov_b32 s{sSRDW}, s6\ns_mov_b32 s{sSRDW+1}, s7\ns_mov_b32 s{sSRDW+2}, 7864320\ns_mov_b32 s{sSRDW+3}, 0x20000")
        P.I(f"s_mul_i32 s46, s{sB}, 2048000\ns_add_u32 s46, s46, {WS_H}")
        P.I(f"s_add_u32 s{sSRDH}, s{sWs}, s46\ns_addc_u32 s{sSRDH+1}, s{sWs+1}, 0\ns_mov_b32 s{sSRDH+2}, 2048000\ns_mov_b32 s{sSRDH+3}, 0x20000")
    else:
        P.I(f"s_mul_i32 s46, s{sB}, 2048000\ns_add_u32 s46, s46, {WS_H}")
        P.I(f"s_add_u32 s{sSRDX}, s{sWs}, s46\ns_addc_u32 s{sSRDX+1}, s{sWs+1}, 0\ns_mov_b32 s{sSRDX+2}, 2048000\ns_mov_b32 s{sSRDX+3}, 0x20000")
        P.I(f"s_lshl_b32 s46, s43, 2\ns_add_u32 s46, s46, s{sW_}\ns_mul_i32 s46, s46, 122880\ns_add_u32 s46, s46, {WS_W2}")
        P.I(f"s_add_u32 s{sSRDW}, s{sWs}, s46\ns_addc_u32 s{sSRDW+1}, s{sWs+1}, 0\ns_mov_b32 s{sSRDW+2}, 122880\ns_mov_b32 s{sSRDW+3}, 0x20000")
        P.I(f"s_mul_i32 s46, s{sB}, 1024000\ns_add_u32 s46, s46, {WS_F}")
        P.I(f"s_add_u32 s{sSRDH}, s{sWs}, s46\ns_addc_u32 s{sSRDH+1}, s{sWs+1}, 0\ns_mov_b32 s{sSRDH+2}, 1024000\ns_mov_b32 s{sSRDH+3}, 0x20000")
    P.I(f"s_lshl_b32 s46, s{sT0}, 11\ns_lshl_b32 s47, s{sW_}, 13\ns_add_u32 s46, s46, s47\ns_sub_u32 s{sXa}, s46, 8192")
    P.I(f"s_cmp_eq_u32 s46, 0")
    P.I(f"s_cselect_b32 s{sXb}, 0, s{sXa}\ns_cselect_b32 s48, 1, 0")
    P.I(f"s_lshl_b32 s{sXlds}, s{sW_}, 10")
    P.I(f"v_lshrrev_b32 v3, 4, v{vLane}")
    P.I(f"v_and_b32 v20, 15, v{vLane}")
    P.I(f"v_lshlrev_b32 v21, 11, v3\nv_add_u32 v21, 1024, v21")
    P.I(f"s_lshr_b32 s49, s{sW_}, 1")
    for kk in range(4):
        P.I(f"s_add_u32 s50, s49, {2*kk}\ns_and_b32 s50, s50, 7\ns_lshl_b32 s50, s50, 1")
        P.I(f"v_xor_b32 v22, s50, v20\nv_lshl_add_u32 v{vXpat[kk]}, v22, 4, v21")
    P.I(f"v_mov_b32 v{vK0[0]}, v{vXpat[0]}\nv_add_u32 v{vK0[1]}, 1024, v{vXpat[0]}")
    P.I(f"s_cmp_eq_u32 s48, 0\ns_cbranch_scc1 {name}_nospecial")
    P.I(f"v_mov_b32 v{vK0[0]}, s{sOOB}\nv_lshlrev_b32 v22, 4, v20\nv_mov_b32 v23, s{sOOB}")
    P.I(f"v_cmp_eq_u32 vcc, 3, v3\ns_nop 1\nv_cndmask_b32 v{vK0[1]}, v23, v22, vcc")
    P.L(f"{name}_nospecial")
    T = Tracker(P)
    def xdma(e, k, it, bufoff=0):
        def setup():
            P.I(f"s_add_u32 m0, s{sXlds}, {e*XBUF + k*4096 + bufoff}")
            if k: P.I(f"s_add_u32 s{sT}, s{sXa}, {e*1024 + k*32768}")
            else: P.I("s_nop 0")
        def go():
            if k: P.I(f"buffer_load_dwordx4 v{vXpat[k&3]}, s[{sSRDX}:{sSRDX+3}], s{sT} offen lds")
            else: P.I(f"buffer_load_dwordx4 v{vK0[e]}, s[{sSRDX}:{sSRDX+3}], s{sXb} offen lds")
            T.vm(('X', it, e, k))
        return setup, go
    if pdbg: ST.stamp()
    for k in range(9):
        s_, g_ = xdma(0, k, 0); s_(); g_()
    if K1:
        P.I(f"s_mul_i32 s{sWlds}, s{sW_}, 20480\ns_add_u32 s{sWlds}, s{sWlds}, {WF}")
        P.I(f"s_lshl_b32 s{sWbase}, s{sW_}, 15\ns_add_u32 s{sWbase}, s{sWbase}, s{sD0}\ns_add_u32 s{sWnext}, s{sWbase}, 131072")
        P.I(f"v_lshrrev_b32 v22, 3, v{vLane}")
        P.I(f"v_and_b32 v23, 1, v22\nv_lshlrev_b32 v23, 3, v23")
        P.I(f"v_bfe_u32 v24, v22, 1, 1\nv_lshl_add_u32 v23, v24, 2, v23")
        P.I(f"v_lshrrev_b32 v24, 2, v22\nv_lshl_add_u32 v23, v24, 4, v23")
        P.I(f"v_lshlrev_b32 v23, 10, v23\nv_and_b32 v24, 7, v{vLane}")
        for k in range(4):
            P.I(f"v_xor_b32 v25, {2*k}, v24\nv_lshl_add_u32 v{vW[k]}, v25, 4, v23")
    else:
        P.I(f"v_lshlrev_b32 v{vW2}, 4, v{vLane}\ns_mov_b32 s{sWbase}, 0")
    def wdma_setup(S):
        def f():
            s = S % 15
            cur = S < 5 or (S // 15) == ((S - 5) // 15)
            base = sWbase if cur else sWnext
            P.I(f"s_add_u32 m0, s{sWlds}, {(S % 5) * 4096}")
            P.I(f"s_add_u32 s{sT}, s{base}, {tap_of(s) * 524288}")
        return f
    def wdma(S, k):
        def f():
            P.I(f"buffer_load_dwordx4 v{vW[k]}, s[{sSRDW}:{sSRDW+3}], s{sT} offen offset:{k*1024} lds")
            T.vm(('W', S, k))
        return f
    def wload2(S, m):
        def f():
            r = aW2(S, m)
            P.I(f"buffer_load_dwordx4 a[{r}:{r+3}], v{vW2}, s[{sSRDW}:{sSRDW+3}], s{sWbase} offen offset:{m*1024}")
            T.vm(('W', S, m))
            if m == 1: P.I(f"s_add_u32 s{sWbase}, s{sWbase}, 2048")
        return f
    def wread(S, m, hh):
        def f():
            P.I(f"ds_read_b64_tr_b16 a[{aW(m)+2*hh}:{aW(m)+2*hh+1}], v{vWr[m]} offset:{(S%5)*4096 + hh*256}")
            T.lds(('W', S, m, hh))
        return f
    def xread(it, e, sg):
        def f():
            r = aX(e, sg)
            P.I(f"ds_read_b128 a[{r}:{r+3}], v{vXr[sg>>3]} offset:{e*XBUF + sg*256}")
            T.lds(('X', it, e, sg))
        return f
    if K1:
        for S in range(5):
            if S in (1, 2):
                for k in (range(0, 5) if S == 1 else range(5, 9)):
                    s_, g_ = xdma(1, k, 0); s_(); g_()
            wdma_setup(S)()
            for k in range(4): wdma(S, k)()
        XA = 1
    else:
        XA = 2
        for S in range(D2):
            if S == 1:
                for k in range(9):
                    s_, g_ = xdma(1, k, 0); s_(); g_()
            for m in range(2): wload2(S, m)()
        P.I(f"s_add_u32 s{sXa}, s{sXa}, 256\ns_add_u32 s{sXb}, s{sXb}, 256")
        for e in range(2):
            for k in range(9):
                s_, g_ = xdma(e, k, 1, bufoff=2*XBUF); s_(); g_()
        P.I(f"s_mov_b32 s{sDelta}, {2*XBUF}")
    P.I(f"s_add_u32 s{sXa}, s{sXa}, 256\ns_add_u32 s{sXb}, s{sXb}, 256\ns_mov_b32 s{sIt}, 0")
    P.I(f"s_lshl_b32 s50, s{sW_}, 2\nv_add_u32 v22, s50, v3")
    for h in range(2):
        P.I(f"v_add_u32 v23, {h}, v20\nv_and_b32 v23, 7, v23\nv_lshlrev_b32 v23, 1, v23\nv_xor_b32 v23, v23, v22\nv_lshlrev_b32 v23, 4, v23")
        P.I(f"v_lshl_add_u32 v{vXr[h]}, v20, 11, v23")
    if K1:
        P.I(f"v_lshrrev_b32 v22, 2, v20\nv_and_b32 v23, 3, v20")
        P.I(f"v_and_b32 v24, 1, v3\nv_lshrrev_b32 v25, 1, v3\nv_lshl_add_u32 v24, v25, 2, v24\nv_lshlrev_b32 v24, 7, v24")
        P.I(f"v_lshl_add_u32 v24, v22, 10, v24\nv_lshl_add_u32 v24, v23, 3, v24\nv_add_u32 v24, s{sWlds}, v24")
        for m in range(4):
            P.I(f"v_xor_b32 v25, {m}, v22\nv_lshl_add_u32 v{vWr[m]}, v25, 5, v24")
    for i in range(8 * nD * 4): P.I(f"v_mov_b32 v{ACC+i}, 0")
    if pdbg: ST.stamp()
    T.need_vm(*[('X', 0, 0, k) for k in range(9)])
    if pdbg: ST.stamp()
    P.I("s_barrier")
    for sg in range(8): xread(0, 0, sg)()
    if K1:
        T.need_vm(*[('W', 0, k) for k in range(4)])
        for m in range(3):
            for hh in range(2): wread(0, m, hh)()
    T.all_lds()
    def body(it, last=False):
        for s in range(15):
            S = it * 15 + s
            e = 0 if s < 8 else 1; j = s if s < 8 else s - 8
            fill = [[] for _ in range(NM)]
            xr = sorted([(ee, sg) for (ee, sg), st in xload.items() if st == s])
            if K1:
                fill[0].append(wread(S, 3, 0)); fill[1].append(wread(S, 3, 1))
                fill[8].append(lambda S=S: T.need_vm(*[('W', S + 1, k) for k in range(4)]))
                fill[9].append(wread(S + 1, 0, 0)); fill[10].append(wread(S + 1, 0, 1))
                fill[16].append(wread(S + 1, 1, 0)); fill[17].append(wread(S + 1, 1, 1))
                fill[24].append(wread(S + 1, 2, 0)); fill[25].append(wread(S + 1, 2, 1))
                if not (last and s >= 10):
                    fill[18].append(wdma_setup(S + 5))
                    fill[19].append(lambda S=S: T.need_lds(('W', S, 3, 0), ('W', S, 3, 1)))
                    for k, pos in enumerate((20, 22, 26, 28)): fill[pos].append(wdma(S + 5, k))
                if last and s == 14:
                    for pos in (8, 9, 10, 16, 17, 24, 25): fill[pos] = []
                xpos = (12, 14, 3, 5)
                xd = {4: (0, range(0, 5)), 5: (0, range(5, 9)), 11: (1, range(0, 5)), 12: (1, range(5, 9))}
                xdp = ((2, 3), (4, 5), (6, 7), (11, 13), (14, 15))
            else:
                fill[1].append(wload2(S + D2, 0)); fill[9].append(wload2(S + D2, 1))
                xpos = (3, 11, 6, 14)
                xd = {4: (0, range(0, 3)), 5: (0, range(3, 6)), 6: (0, range(6, 9)), 11: (1, range(0, 3)), 12: (1, range(3, 6)), 13: (1, range(6, 9))}
                xdp = ((4, 5), (7, 8), (12, 13))
            for (ee, sg), pos in zip(xr, xpos):
                iit = it + 1 if (ee == 0 and sg < 8) else it
                if last and iit > it: continue
                fill[pos].append(xread(iit, ee, sg))
            if s in xd and not last:
                ee, ks = xd[s]
                for k, (ps, pg) in zip(ks, xdp):
                    s_, g_ = xdma(ee, k, it + XA)
                    fill[ps].append(s_); fill[pg].append(g_)
            if s == 14 and not last:
                fill[2].append(lambda: P.I(f"s_add_u32 s{sIt}, s{sIt}, 1"))
                if K1:
                    fill[29].append(lambda: P.I(f"s_add_u32 s{sWbase}, s{sWbase}, 131072\ns_add_u32 s{sWnext}, s{sWnext}, 131072"))
                    fill[30].append(lambda: P.I(f"s_add_u32 s{sXa}, s{sXa}, 256\ns_add_u32 s{sXb}, s{sXb}, 256"))
                else:
                    fill[13].append(lambda: P.I(f"s_add_u32 s{sXa}, s{sXa}, 256\ns_add_u32 s{sXb}, s{sXb}, 256"))
                    fill[14].append(lambda: P.I(f"s_xor_b32 s{sXlds}, s{sXlds}, s63"))
                    fill[15].append(lambda: P.I(f"s_cmp_ge_u32 s{sIt}, 2\ns_cselect_b32 s{sXa}, s{sOOB}, s{sXa}\ns_cselect_b32 s{sXb}, s{sOOB}, s{sXb}"))
            for pp in range(NM):
                m, n = pp >> 3, pp & 7
                if K1:
                    if n == 0: T.need_lds(('W', S, m, 0), ('W', S, m, 1))
                    wa = aW(m)
                else:
                    if n == 0: T.need_vm(('W', S, m))
                    wa = aW2(S, m)
                if m == 0: T.need_lds(('X', it, e, j + n))
                a = acc(n, m); x = aX(e, j + n)
                P.I(f"v_mfma_f32_16x16x32_bf16 v[{a}:{a+3}], a[{wa}:{wa+3}], a[{x}:{x+3}], v[{a}:{a+3}]")
                for f in fill[pp]: f()
            if s in (3, 10):
                T.all_lds()
                if s == 3: T.need_vm(*[('X', it, 1, k) for k in range(9)])
                elif not last: T.need_vm(*[('X', it + 1, 0, k) for k in range(9)])
                P.I("s_barrier")
                if s == 10 and not K1:
                    P.I(f"v_add_u32 v{vXr[0]}, s{sDelta}, v{vXr[0]}\nv_add_u32 v{vXr[1]}, s{sDelta}, v{vXr[1]}\ns_sub_u32 s{sDelta}, 0, s{sDelta}")
    if not K1:
        P.I(f"s_add_u32 s63, s{sXlds}, {2*XBUF}\ns_xor_b32 s63, s63, s{sXlds}")
    st0 = (list(T.vq), list(T.lq), set(T.done))
    P.on = False
    T.start_record(); body(0); body(1)
    T.start_record(); body(2); rec = list(T.rec)
    T.vq, T.lq, T.done = list(st0[0]), list(st0[1]), set(st0[2])
    P.on = True
    ST.stamp(0)
    P.L(f"{name}_loop")
    T.start_replay(rec); body(0)
    P.on = False
    NLOOP = 3 if K1 else 4
    for it in range(1, NLOOP):
        T.start_replay(rec); body(it)
    P.on = True
    if itdbg:
        P.I("s_memrealtime s[98:99]\ns_waitcnt lgkmcnt(0)")
        for k in range(1, 4):
            P.I(f"s_cmp_eq_u32 s{sIt}, {k}\ns_cselect_b32 s{90+2*k}, s98, s{90+2*k}")
        ST.n = 5
    P.I(f"s_cmp_lt_u32 s{sIt}, {NLOOP}\ns_cbranch_scc1 {name}_loop")
    if K1:
        T.start_record(); body(3, last=True)
    if pdbg: P.I("s_memtime s[100:101]")
    elif itdbg: pass
    else: ST.stamp(1)
    NT = 2 * nD
    RS = 3 * NT * 1024
    vA, vT, vR = 20, 21, 22
    P.I(f"v_lshlrev_b32 v{vA}, 4, v{vLane}\nv_add_u32 v{vT}, 0x10000, v{vA}")
    P.I(f"s_mul_i32 s41, s{sW_}, {RS}\nv_add_u32 v{vR}, s41, v{vA}")
    vC0, vC1, vOne = 24, 26, 28
    P.I(f"v_mov_b32 v{vC0}, {f32(C0)}\nv_mov_b32 v{vC0+1}, {f32(C0)}\nv_mov_b32 v{vC1}, {f32(C1)}\nv_mov_b32 v{vC1+1}, {f32(C1)}")
    P.I(f"v_mov_b32 v{vOne}, 1.0\nv_mov_b32 v{vOne+1}, 1.0")
    vTw = [4, 5, 6, 7]; vHs = 8
    RB = 32 * nD
    xm = 7 if K1 else 3
    P.I(f"v_and_b32 v10, 15, v{vLane}\nv_lshrrev_b32 v11, 4, v{vLane}\nv_and_b32 v12, {xm}, v10\nv_lshlrev_b32 v12, 1, v12")
    P.I(f"v_mul_u32_u24 v13, {RB}, v10\nv_add_u32 v13, s41, v13")
    for m in range(nD):
        P.I(f"v_add_u32 v14, {4*m}, v11\nv_xor_b32 v14, v14, v12\nv_lshl_add_u32 v{vTw[m]}, v14, 3, v13")
    if K1:
        P.I(f"v_lshrrev_b32 v10, 3, v{vLane}\nv_and_b32 v11, 7, v{vLane}\nv_xor_b32 v11, v11, v10\nv_lshlrev_b32 v11, 4, v11")
        P.I(f"v_lshl_add_u32 v{vHs}, v10, 13, v11")
    else:
        P.I(f"v_lshrrev_b32 v10, 2, v{vLane}\nv_xor_b32 v11, v10, v{vLane}\nv_and_b32 v11, 3, v11\nv_lshlrev_b32 v11, 4, v11")
        P.I(f"v_lshl_add_u32 v{vHs}, v10, 13, v11")
    P.I("s_waitcnt vmcnt(0) lgkmcnt(0)\ns_barrier")
    for w in range(4):
        P.I(f"s_cmp_lg_u32 s{sW_}, {w}\ns_cbranch_scc1 {name}_red{w}")
        for w2 in range(4):
            if w2 == w: continue
            idx = (w ^ w2) - 1
            for t in range(NT):
                a = ACC + w2 * BLK + 4 * t
                off = w2 * RS + idx * NT * 1024 + t * 1024
                if off < 65536: P.I(f"ds_write_b128 v{vA}, v[{a}:{a+3}] offset:{off}")
                else: P.I(f"ds_write_b128 v{vT}, v[{a}:{a+3}] offset:{off-65536}")
        P.I("s_waitcnt lgkmcnt(0)\ns_barrier")
        for idx in range(3):
            for t in range(NT):
                r = ACC + (w ^ (idx + 1)) * BLK + 4 * t
                P.I(f"ds_read_b128 v[{r}:{r+3}], v{vR} offset:{idx*NT*1024 + t*1024}")
        P.I(f"s_branch {name}_redd")
        P.L(f"{name}_red{w}")
    P.L(f"{name}_redd")
    P.I("s_waitcnt lgkmcnt(0)")
    OWN = ACC
    def pk_add(d, a, b): P.I(f"v_pk_add_f32 v[{d}:{d+1}], v[{a}:{a+1}], v[{b}:{b+1}]")
    for i in range(0, BLK, 2): pk_add(ACC + i, ACC + i, ACC + BLK + i)
    for i in range(0, BLK, 2): pk_add(ACC + 2*BLK + i, ACC + 2*BLK + i, ACC + 3*BLK + i)
    for i in range(0, BLK, 2): pk_add(ACC + i, ACC + i, ACC + 2*BLK + i)
    TMP = ACC + BLK
    for g in range(BLK // 16):
        gelu_pairs(P, [OWN + 16*g + 2*i for i in range(8)], [TMP + 16*g + 2*i for i in range(8)], vC0, vC1, vOne)
    PK = ACC + 2 * BLK
    for t in range(NT):
        P.I(f"v_cvt_pk_bf16_f32 v{PK+2*t}, v{OWN+4*t}, v{OWN+4*t+1}\nv_cvt_pk_bf16_f32 v{PK+2*t+1}, v{OWN+4*t+2}, v{OWN+4*t+3}")
    for t in range(NT):
        nn, m = t // nD, t % nD
        P.I(f"ds_write_b64 v{vTw[m]}, v[{PK+2*t}:{PK+2*t+1}] offset:{nn*16*RB}")
    P.I("s_waitcnt lgkmcnt(0)")
    NS = nD
    for i in range(NS): P.I(f"ds_read_b128 v[{TMP+4*i}:{TMP+4*i+3}], v{vR} offset:{i*1024}")
    P.I(f"s_lshl_b32 s42, s{sW_}, 1\ns_add_u32 s42, s42, s{sT0}\ns_lshl_b32 s42, s42, 10\ns_add_u32 s42, s42, s{sD0}")
    for i in range(NS):
        off = ((i >> 1) + 64 * (i & 1)) * 1024 if K1 else i * 1024
        P.I(f"s_add_u32 s{sT}, s42, {off}")
        P.I(f"s_waitcnt lgkmcnt({NS-1-i})")
        P.I(f"buffer_store_dwordx4 v[{TMP+4*i}:{TMP+4*i+3}], v{vHs}, s[{sSRDH}:{sSRDH+3}], s{sT} offen {oflav}")
    if not pdbg and not itdbg: ST.stamp()
    P.I("s_waitcnt vmcnt(0)")
    if not pdbg and not itdbg: ST.stamp()
    ST.flush(sWs, sW_)
    P.L(f"{name}_end")
    P.I("s_endpgm")
    if K1 and helper: gen_helper(P, name, sWs, sOOB, sflav, hskip)

def kernel_desc(name, vgpr, accum, sgpr=102):
    return f""".p2align 6
.amdhsa_kernel {name}
  .amdhsa_next_free_vgpr {vgpr}
  .amdhsa_next_free_sgpr {sgpr}
  .amdhsa_accum_offset {accum}
  .amdhsa_group_segment_fixed_size 0
  .amdhsa_kernarg_size 80
  .amdhsa_user_sgpr_count 2
  .amdhsa_user_sgpr_kernarg_segment_ptr 1
  .amdhsa_system_sgpr_workgroup_id_x 1
  .amdhsa_float_denorm_mode_32 3
.end_amdhsa_kernel
"""
```

```python
from asmlib import *
from conv import *

CC = 2.0 * math.log2(math.e)
WS_CA = WS_EA
WS_CB = WS_EB

WS_FLAGS = WS_FLAG

def gen_proj(P, name="proj_kernel", stamps=False, kidx=2, oflav="sc1"):
    ST = Stamps(P, stamps, kidx)
    vLane = 2
    sWs, sW_ = 20, 28
    sSRDA, sSRDW, sSRDO = 8, 12, 16
    P.raw(f".globl {name}\n.p2align 8\n.type {name},@function\n{name}:")
    P.I("s_cmp_ge_u32 s2, 264"); P.I(f"s_cbranch_scc1 {name}_end")
    ST.stamp()
    P.I(f"s_load_dwordx2 s[{sWs}:{sWs+1}], s[0:1], 72\ns_load_dwordx2 s[4:5], s[0:1], 24")
    P.I(f"v_lshrrev_b32 v1, 6, v0\nv_and_b32 v{vLane}, 63, v0")
    P.I("s_cmp_lt_u32 s2, 8\ns_cselect_b32 s46, 1, 0\ns_sub_u32 s40, s2, 8")
    P.I("s_and_b32 s41, s40, 7\ns_lshr_b32 s42, s40, 3")
    P.I(f"v_readfirstlane_b32 s{sW_}, v1")
    P.I("s_and_b32 s43, s42, 7\ns_lshr_b32 s44, s42, 3\ns_lshl_b32 s45, s41, 2\ns_add_u32 s44, s44, s45")
    P.I("s_cmp_eq_u32 s46, 1\ns_cselect_b32 s43, s2, s43\ns_cselect_b32 s44, 0, s44")
    P.I("s_waitcnt lgkmcnt(0)")
    P.I(f"s_add_u32 s48, s{sWs}, {WS_F}\ns_addc_u32 s49, s{sWs+1}, 0")
    P.I(f"s_cmp_eq_u32 s46, 1\ns_cselect_b32 s{sSRDA}, s4, s48\ns_cselect_b32 s{sSRDA+1}, s5, s49\ns_mov_b32 s{sSRDA+2}, 2048000\ns_cselect_b32 s{sSRDA+2}, 16384, s{sSRDA+2}\ns_mov_b32 s{sSRDA+3}, 0x20000")
    P.I(f"s_mov_b32 s47, {WS_WF}\ns_cselect_b32 s47, {WS_WG}, s47")
    P.I(f"s_lshl_b32 s48, s43, 2\ns_add_u32 s48, s48, s{sW_}\ns_lshl_b32 s48, s48, 14\ns_add_u32 s47, s47, s48")
    P.I(f"s_add_u32 s{sSRDW}, s{sWs}, s47\ns_addc_u32 s{sSRDW+1}, s{sWs+1}, 0\ns_mov_b32 s{sSRDW+2}, 16384\ns_mov_b32 s{sSRDW+3}, 0x20000")
    vP = [4 + i for i in range(8)]
    P.I(f"v_lshlrev_b32 v3, 4, v{vLane}")
    for q in range(8): P.I(f"v_xor_b32 v{vP[q]}, {32*q}, v3")
    P.I(f"s_lshl_b32 s48, s44, 6\ns_lshl_b32 s49, s{sW_}, 4\ns_add_u32 s48, s48, s49\ns_lshl_b32 s48, s48, 10")
    P.I(f"s_lshl_b32 s50, s{sW_}, 14")
    T = Tracker(P)
    def wl(ks):
        if ks % 4 == 0: P.I(f"s_mov_b32 s37, {ks*1024}")
        P.I(f"buffer_load_dwordx4 a[{4*ks}:{4*ks+3}], v3, s[{sSRDW}:{sSRDW+3}], s37 offen offset:{(ks&3)*1024}")
        T.vm(('W', ks))
    for k in range(16):
        P.I(f"s_add_u32 m0, s50, {k*1024}\ns_add_u32 s36, s48, {k*1024}")
        P.I(f"buffer_load_dwordx4 v{vP[k&7]}, s[{sSRDA}:{sSRDA+3}], s36 offen lds")
        T.vm(('F', k))
        if k >= 12: wl(k - 12)
    for ks in range(4, 16): wl(ks)
    P.I(f"s_cmp_eq_u32 s46, 1\ns_mov_b32 s47, {WS_CA}\ns_mov_b32 s{sSRDO+2}, 4096000\ns_cselect_b32 s47, {WS_CB}, s47\ns_cselect_b32 s{sSRDO+2}, 32768, s{sSRDO+2}")
    P.I(f"s_add_u32 s{sSRDO}, s{sWs}, s47\ns_addc_u32 s{sSRDO+1}, s{sWs+1}, 0\ns_mov_b32 s{sSRDO+3}, 0x20000")
    vB = [12, 13, 14, 15]
    P.I(f"v_and_b32 v16, 15, v{vLane}\nv_lshrrev_b32 v17, 4, v{vLane}\nv_and_b32 v18, 7, v16\nv_lshlrev_b32 v18, 1, v18\nv_lshlrev_b32 v19, 10, v16")
    for q in range(4):
        P.I(f"v_add_u32 v20, {4*q}, v17\nv_xor_b32 v20, v20, v18\nv_lshl_add_u32 v{vB[q]}, v20, 4, v19")
    vOw, vOr, vO = 21, 23, 24
    P.I(f"s_lshl_b32 s52, s{sW_}, 2\nv_add_u32 v20, s52, v17\nv_xor_b32 v20, v20, v16\nv_lshlrev_b32 v20, 4, v20\nv_lshl_add_u32 v{vOw}, v16, 8, v20")
    P.I(f"s_lshl_b32 s52, s{sW_}, 12\nv_add_u32 v{vOr}, s52, v3")
    vO4 = [24, 25, 26, 27]
    for i in range(4):
        P.I(f"v_add_u32 v20, {4*i}, v17\nv_xor_b32 v28, v20, v16\nv_lshlrev_b32 v28, 4, v28\nv_lshl_add_u32 v{vO4[i]}, v20, 11, v28")
    P.I(f"s_lshl_b32 s51, s44, 6\ns_lshl_b32 s52, s{sW_}, 4\ns_add_u32 s51, s51, s52\ns_lshl_b32 s51, s51, 11\ns_lshl_b32 s52, s43, 8\ns_add_u32 s51, s51, s52")
    ACC = 32
    for i in range(16): P.I(f"v_mov_b32 v{ACC+i}, 0")
    P.I(f"v_mov_b32 v22, {f32(CC)}")
    ST.stamp(0)
    T.need_vm(*[('F', k) for k in range(16)])
    P.I("s_barrier")
    RING = 64
    def rd(ks, n):
        r = RING + ((ks * 4 + n) % 16) * 4
        P.I(f"ds_read_b128 v[{r}:{r+3}], v{vB[ks&3]} offset:{(ks>>2)*256 + n*16384}")
        T.lds((ks, n))
    for ks in range(3):
        for n in range(4): rd(ks, n)
    for ks in range(16):
        T.need_vm(('W', ks))
        for n in range(4):
            T.need_lds((ks, n))
            r = RING + ((ks * 4 + n) % 16) * 4
            P.I(f"v_mfma_f32_16x16x32_bf16 v[{ACC+4*n}:{ACC+4*n+3}], a[{4*ks}:{4*ks+3}], v[{r}:{r+3}], v[{ACC+4*n}:{ACC+4*n+3}]")
            if ks + 3 < 16: rd(ks + 3, n)
    ST.stamp(1)
    P.I("s_barrier")
    P.I("s_nop 4")
    for i in range(16): P.I(f"v_mul_f32 v{ACC+i}, v22, v{ACC+i}")
    for n in range(4): P.I(f"ds_write_b128 v{vOw}, v[{ACC+4*n}:{ACC+4*n+3}] offset:{n*4096}")
    P.I("v_mov_b32 v5, 0")
    for i in range(0, 16, 2): P.I(f"v_max3_f32 v5, abs(v{ACC+i}), abs(v{ACC+i+1}), v5")
    P.I(f"v_cmp_lt_f32 vcc, {f32(60.0)}, v5")
    P.I(f"s_lshl_b32 s52, s44, 5\ns_lshl_b32 s53, s43, 2\ns_add_u32 s52, s52, s53\ns_add_u32 s52, s52, s{sW_}\ns_cmp_eq_u32 s46, 1\ns_cselect_b32 s53, 1024, 0\ns_add_u32 s52, s52, s53\ns_lshl_b32 s52, s52, 2")
    P.I(f"s_add_u32 s56, s{sWs}, {WS_FLAGS}\ns_addc_u32 s57, s{sWs+1}, 0\ns_mov_b32 s58, 8192\ns_mov_b32 s59, 0x20000")
    P.I("s_cmp_lg_u64 vcc, 0\ns_cselect_b32 s53, 1, 0\nv_mov_b32 v6, s53\nv_mov_b32 v7, s52")
    P.I("s_waitcnt lgkmcnt(0)\ns_barrier")
    for i in range(4): P.I(f"ds_read_b128 v[{RING+4*i}:{RING+4*i+3}], v{vOr} offset:{i*1024}")
    P.I("s_mov_b64 s[60:61], exec\ns_mov_b64 exec, 1\nbuffer_store_dword v6, v7, s[56:59], 0 offen\ns_mov_b64 exec, s[60:61]")
    for i in range(4):
        P.I(f"s_waitcnt lgkmcnt({3-i})")
        P.I(f"buffer_store_dwordx4 v[{RING+4*i}:{RING+4*i+3}], v{vO4[i]}, s[{sSRDO}:{sSRDO+3}], s51 offen {oflav}")
    ST.stamp()
    P.I("s_waitcnt vmcnt(0)")
    ST.stamp()
    ST.flush(sWs, sW_)
    P.L(f"{name}_end")
    P.I("s_endpgm")


def gen_joint(P, name="joint_kernel", stamps=False, kidx=3, oflav="sc1", LA=6, budget=24, WPACE=56, bdbg=False, skip=()):
    ST = Stamps(P, stamps, kidx)
    vLane = 2
    sWs, sW_ = 20, 28
    sCA, sCB, sWO, sOUT = 8, 12, 16, 24
    sRow, sOut0 = 30, 31
    vL32, vL16, vCBr = 3, 4, 248
    vJw = list(range(8, 16)); vJr = list(range(16, 24)); vOw = [24, 25, 26, 27]; vOr, vOs = 28, 29
    E = 32
    CAR = [96, 104]
    ACC = [112, 144]
    RING = 176
    X = [208, 216]
    PK = [224, 228]
    OP = 232
    P.raw(f".globl {name}\n.p2align 8\n.type {name},@function\n{name}:")
    P.I("s_and_b32 s41, s2, 7\ns_lshr_b32 s42, s2, 3\ns_lshr_b32 s43, s41, 1\ns_lshl_b32 s44, s42, 2\ns_add_u32 s43, s43, s44")
    P.I(f"s_cmp_ge_u32 s43, 126\ns_cbranch_scc1 {name}_end")
    ST.stamp()
    P.I(f"s_load_dwordx2 s[{sWs}:{sWs+1}], s[0:1], 72\ns_load_dwordx2 s[4:5], s[0:1], 56")
    P.I(f"v_lshrrev_b32 v1, 6, v0\nv_and_b32 v{vLane}, 63, v0")
    P.I("s_and_b32 s45, s41, 1")
    P.I(f"v_readfirstlane_b32 s{sW_}, v1")
    P.I("s_cmp_ge_u32 s43, 63\ns_cselect_b32 s46, 1, 0\ns_cselect_b32 s47, 63, 0\ns_sub_u32 s43, s43, s47\ns_lshl_b32 s43, s43, 4")
    P.I(f"v_lshlrev_b32 v{vL32}, 5, v{vLane}\nv_lshlrev_b32 v{vL16}, 4, v{vLane}")
    P.I("s_waitcnt lgkmcnt(0)")
    P.I(f"s_mul_i32 s47, s46, 2048000\ns_add_u32 s47, s47, {WS_CA}\ns_add_u32 s{sCA}, s{sWs}, s47\ns_addc_u32 s{sCA+1}, s{sWs+1}, 0\ns_mov_b32 s{sCA+2}, 2048000\ns_mov_b32 s{sCA+3}, 0x20000")
    P.I(f"s_lshl_b32 s47, s46, 14\ns_add_u32 s47, s47, {WS_CB}\ns_add_u32 s{sCB}, s{sWs}, s47\ns_addc_u32 s{sCB+1}, s{sWs+1}, 0\ns_mov_b32 s{sCB+2}, 16384\ns_mov_b32 s{sCB+3}, 0x20000")
    P.I(f"s_lshl_b32 s47, s45, 2\ns_add_u32 s47, s47, s{sW_}\ns_lshl_b32 s47, s47, 16\ns_add_u32 s47, s47, {WS_WO}")
    P.I(f"s_add_u32 s{sWO}, s{sWs}, s47\ns_addc_u32 s{sWO+1}, s{sWs+1}, 0\ns_mov_b32 s{sWO+2}, 65536\ns_mov_b32 s{sWO+3}, 0x20000")
    P.I(f"s_mul_i32 s47, s46, 8192000\ns_add_u32 s{sOUT}, s4, s47\ns_addc_u32 s{sOUT+1}, s5, 0\ns_mov_b32 s{sOUT+2}, 8192000\ns_mov_b32 s{sOUT+3}, 0x20000")
    P.I(f"s_add_u32 s{sRow}, s43, s{sW_}\ns_lshl_b32 s{sRow}, s{sRow}, 11")
    P.I(f"s_lshl_b32 s{sOut0}, s43, 13\ns_lshl_b32 s47, s45, 9\ns_add_u32 s{sOut0}, s{sOut0}, s47\ns_lshl_b32 s47, s{sW_}, 7\ns_add_u32 s{sOut0}, s{sOut0}, s47")
    T = Tracker(P)
    def ca_load(r, dst, tag='CA'):
        P.I(f"s_add_u32 s36, s{sRow}, {r*4*2048}")
        for h in range(2):
            P.I(f"buffer_load_dwordx4 v[{dst+4*h}:{dst+4*h+3}], v{vL32}, s[{sCA}:{sCA+3}], s36 offen offset:{16*h}")
            T.vm((tag, r, h))
    P.I(f"s_mul_i32 s47, s46, 1000\ns_add_u32 s47, s47, s43\ns_lshr_b32 s47, s47, 6\ns_lshl_b32 s47, s47, 7")
    P.I(f"s_add_u32 s56, s{sWs}, {WS_FLAGS}\ns_addc_u32 s57, s{sWs+1}, 0\ns_mov_b32 s58, 4224\ns_mov_b32 s59, 0x20000")
    P.I(f"v_lshlrev_b32 v5, 2, v{vLane}\nv_and_b32 v6, 31, v{vLane}\nv_lshlrev_b32 v6, 2, v6")
    P.I(f"buffer_load_dword v30, v5, s[56:59], s47 offen"); T.vm('FL0')
    P.I(f"s_mov_b32 s47, 4096\nbuffer_load_dword v31, v6, s[56:59], s47 offen"); T.vm('FL1')
    CBL = 81920
    P.I(f"s_lshl_b32 s47, s{sW_}, 12\ns_add_u32 s48, s47, {CBL}")
    for k in range(4):
        P.I(f"s_add_u32 m0, s48, {k*1024}\ns_add_u32 s36, s47, {k*1024}")
        P.I(f"buffer_load_dwordx4 v{vL16}, s[{sCB}:{sCB+3}], s36 offen lds"); T.vm(('CB', k))
    ca_load(0, CAR[0]); ca_load(1, CAR[1])
    Wq = list(range(64))
    def wload():
        f = Wq.pop(0)
        if f % 4 == 0: P.I(f"s_mov_b32 s37, {f*1024}")
        P.I(f"buffer_load_dwordx4 a[{4*f}:{4*f+3}], v{vL16}, s[{sWO}:{sWO+3}], s37 offen offset:{(f&3)*1024}")
        T.vm(('W', f))
    for _ in range(4): wload()
    P.I(f"s_and_b32 s47, s{sW_}, 1\ns_lshl_b32 s47, s47, 3\ns_lshl_b32 s48, s{sW_}, 13")
    for u in range(8):
        P.I(f"s_add_u32 s49, s47, {u}\nv_xor_b32 v5, s49, v{vLane}\nv_lshlrev_b32 v5, 4, v5\ns_add_u32 s49, s48, {u*1024}\nv_add_u32 v{vJw[u]}, s49, v5")
        if u % 3 == 2: wload()
    P.I(f"v_and_b32 v5, 31, v{vLane}\nv_lshrrev_b32 v6, 5, v{vLane}\nv_and_b32 v7, 15, v5\nv_lshlrev_b32 v1, 10, v5")
    for q in range(8):
        P.I(f"v_add_u32 v0, {2*q}, v6\nv_xor_b32 v0, v0, v7\nv_lshl_add_u32 v{vJr[q]}, v0, 4, v1")
        if q % 4 == 3: wload()
    P.I(f"s_lshl_b32 s49, s{sW_}, 12\ns_add_u32 s49, s49, 65536")
    P.I(f"v_and_b32 v7, 7, v5\nv_xor_b32 v7, v7, v6\nv_lshlrev_b32 v7, 4, v7\nv_lshl_add_u32 v7, v5, 7, v7\nv_add_u32 v7, s49, v7")
    for i in range(4): P.I(f"v_xor_b32 v{vOw[i]}, {32*i}, v7")
    P.I(f"v_add_u32 v{vOr}, s49, v{vL16}")
    P.I(f"v_lshrrev_b32 v5, 3, v{vLane}\nv_xor_b32 v6, v5, v{vLane}\nv_and_b32 v6, 7, v6\nv_lshlrev_b32 v6, 4, v6\nv_lshl_add_u32 v{vOs}, v5, 10, v6")
    P.I(f"v_add_u32 v{vCBr}, {CBL}, v{vL32}")
    wload()
    T.need_vm('FL0', 'FL1', *[('CB', k) for k in range(4)])
    P.I("v_or_b32 v30, v30, v31\nv_cmp_ne_u32 vcc, 0, v30")
    P.I("s_barrier")
    for u in range(8):
        for h in range(2):
            P.I(f"ds_read_b128 v[{E+8*u+4*h}:{E+8*u+4*h+3}], v{vL32} offset:{CBL - 65536 + u*2048 + 16*h}" if False else
                f"ds_read_b128 v[{E+8*u+4*h}:{E+8*u+4*h+3}], v{vCBr} offset:{u*2048 + 16*h}")
            T.lds(('E', u, h))
    P.I(f"s_cbranch_vccnz {name}_slow")
    st0 = (list(T.vq), list(T.lq), set(T.done), list(Wq))

    def variant(slow):
        T.vq, T.lq, T.done = list(st0[0]), list(st0[1]), set(st0[2])
        Wq[:] = st0[3]
        T.start_record()
        def prod_ops(r):
            ops = []
            ca = CAR[r & 1]
            def need_ca():
                T.need_vm(('CA', r, 0), ('CA', r, 1))
            ops.append((0, need_ca))
            if not slow:
                for i in range(8): ops.append((8, lambda i=i: P.I(f"v_exp_f32 v{ca+i}, v{ca+i}")))
            for u in range(8):
                x = X[u & 1]; pk = PK[u & 1]
                if not slow:
                    for i in range(8): ops.append((4, lambda i=i, x=x, u=u: P.I(f"v_fma_f32 v{x+i}, v{ca+i}, v{E+8*u+i}, 1.0")))
                else:
                    for i in range(8): ops.append((4, lambda i=i, x=x, u=u: P.I(f"v_add_f32 v{x+i}, v{ca+i}, v{E+8*u+i}")))
                    for i in range(8): ops.append((8, lambda i=i, x=x: P.I(f"v_exp_f32 v{x+i}, v{x+i}")))
                    for i in range(8): ops.append((4, lambda i=i, x=x: P.I(f"v_add_f32 v{x+i}, 1.0, v{x+i}")))
                for i in range(8): ops.append((8, lambda i=i, x=x: P.I(f"v_rcp_f32 v{x+i}, v{x+i}")))
                for i in range(8): ops.append((4, lambda i=i, x=x: P.I(f"v_fma_f32 v{x+i}, v{x+i}, -2.0, 1.0")))
                for k in range(4): ops.append((4, lambda k=k, x=x, pk=pk: P.I(f"v_cvt_pk_bf16_f32 v{pk+k}, v{x+2*k}, v{x+2*k+1}")))
                def wr(u=u, pk=pk):
                    if 'jw' in skip: return
                    P.I(f"ds_write_b128 v{vJw[u]}, v[{pk}:{pk+3}] offset:{(r&1)*32768}")
                    T.lds(('JW', r, u))
                ops.append((12, wr))
            if 'valu' in skip and r > 0: ops = [o for o in ops if o[1].__name__ in ('wr', 'need_ca')]
            return ops
        def epi_ops(r, g0=0):
            ops = []
            class L(list):
                pass
            tmin = [g0]
            def add(c, fn): ops.append((tmin[0], c, fn))
            a = ACC[r & 1]
            for vt in range(2):
                for jj in range(4):
                    for k in range(2):
                        d = OP + (vt * 2 + (jj >> 1)) * 4 + (jj & 1) * 2 + k
                        src = a + vt * 16 + jj * 4 + 2 * k
                        add(4, lambda d=d, src=src: P.I(f"v_cvt_pk_bf16_f32 v{d}, v{src}, v{src+1}"))
            add(4, lambda: P.I("s_nop 1"))
            for g in range(4):
                b = OP + 4 * g
                add(4, lambda b=b: P.I(f"v_permlane32_swap_b32 v{b}, v{b+2}"))
                add(4, lambda b=b: P.I(f"v_permlane32_swap_b32 v{b+1}, v{b+3}"))
            for g in range(4):
                def wr(g=g):
                    P.I(f"ds_write_b128 v{vOw[g]}, v[{OP+4*g}:{OP+4*g+3}]"); T.lds(('OW', r, g))
                tmin[0] = g0 + 4 + g if g0 else 0
                add(12, wr)
            tmin[0] = g0 + 11 if g0 else 0
            for i in range(4):
                def rd(i=i):
                    if i == 0: T.need_lds(*[('OW', r, g) for g in range(4)])
                    P.I(f"ds_read_b128 v[{OP+4*i}:{OP+4*i+3}], v{vOr} offset:{i*1024}"); T.lds(('OR', r, i))
                add(4, rd)
            for i in range(4):
                def st(i=i):
                    T.need_lds(('OR', r, i))
                    P.I(f"s_add_u32 s36, s{sOut0}, {(r*32 + 8*i)*1024}")
                    P.I(f"buffer_store_dwordx4 v[{OP+4*i}:{OP+4*i+3}], v{vOs}, s[{sOUT}:{sOUT+3}], s36 offen {oflav}")
                    T.vm(('OS', r, i))
                tmin[0] = g0 + 15 + i if g0 else 0
                add(8, st)
            return ops
        def bread(G):
            r, s = G >> 5, G & 31
            g = RING + (G % 8) * 4
            P.I(f"ds_read_b128 v[{g}:{g+3}], v{vJr[s&7]} offset:{(r&1)*32768 + (s>>3)*256}")
            T.lds(('B', G))
        pro = []
        for u in range(8):
            pro.append((0, lambda u=u: T.need_lds(('E', u, 0), ('E', u, 1))))
            if not slow:
                for i in range(8): pro.append((8, lambda i=i, u=u: P.I(f"v_exp_f32 v{E+8*u+i}, v{E+8*u+i}")))
        pro += prod_ops(0)
        acc_c = 0
        for c, f in pro:
            f(); acc_c += c
            if acc_c >= WPACE and Wq:
                wload(); acc_c = 0
        for i in range(32): P.I(f"v_mov_b32 v{ACC[0]+i}, 0")
        T.all_lds(); P.I("s_barrier")
        for G in range(LA): bread(G)
        ST2 = None
        V = [(4, lambda: ca_load(2, CAR[0]))] + prod_ops(1); Eq = []
        if not slow: ST.stamp(0)
        BAR = 32 - LA
        credit = 0
        for G in range(128):
            r, s = G >> 5, G & 31
            if s == BAR and r < 3:
                while V:
                    c, f = V.pop(0); f()
                T.all_lds(); P.I("s_barrier")
                if bdbg and not slow: ST.stamp()
                if r + 2 <= 3:
                    V = ([(4, lambda r=r: ca_load(r + 3, CAR[(r + 3) & 1]))] if r + 3 <= 3 else []) + prod_ops(r + 2)
                credit = 0
            if s == 4 and r >= 1:
                Eq = epi_ops(r - 1, G) if 'epi' not in skip else []
            if s == 0 and r >= 1:
                pass
            for vt in range(2):
                f = s * 2 + vt
                if r == 0: T.need_vm(('W', f))
                if vt == 0: T.need_lds(('B', G))
                a = ACC[r & 1] + 16 * vt
                g = RING + (G % 8) * 4
                if s == 0 and r >= 1:
                    P.I(f"v_mfma_f32_32x32x16_bf16 v[{a}:{a+15}], a[{4*f}:{4*f+3}], v[{g}:{g+3}], 0")
                else:
                    P.I(f"v_mfma_f32_32x32x16_bf16 v[{a}:{a+15}], a[{4*f}:{4*f+3}], v[{g}:{g+3}], v[{a}:{a+15}]")
                credit += budget
                if r == 0 and Wq and vt == 1:
                    wload(); credit -= 4
                if vt == 0 and G + LA < 128 and not (r < 3 and s + LA >= 32 and s < BAR):
                    bread(G + LA); credit -= 4
                while credit > 0:
                    if Eq and Eq[0][0] <= G:
                        _, c, fn = Eq.pop(0)
                    elif V:
                        c, fn = V.pop(0)
                    else:
                        break
                    fn(); credit -= c
                credit = min(credit, budget)
        assert not V
        while Eq:
            _, c, f = Eq.pop(0); f()
        if not slow:
            if bdbg: P.I("s_memtime s[100:101]")
            else: ST.stamp(1)
        P.I("s_nop 7\ns_nop 7")
        for _, c, f in epi_ops(3): f()
        if not slow and not bdbg: ST.stamp()
        P.I("s_waitcnt vmcnt(0)")
        if not slow and not bdbg: ST.stamp()
    variant(False)
    ST.flush(sWs, sW_)
    P.I("s_endpgm")
    P.L(f"{name}_slow")
    variant(True)
    P.L(f"{name}_end")
    P.I("s_endpgm")
```

```python
class Prog:
    def __init__(self):
        self.lines = []
        self.on = True
    def I(self, s):
        if self.on:
            for x in s.split("\n"):
                self.lines.append("    " + x.strip())
    def L(self, s):
        if self.on: self.lines.append(s + ":")
    def C(self, s):
        if self.on: self.lines.append("    ; " + s)
    def raw(self, s):
        if self.on: self.lines.append(s)
    def text(self):
        return "\n".join(self.lines) + "\n"

class Tracker:
    def __init__(self, prog):
        self.p = prog
        self.vq = []; self.lq = []
        self.done = set()
        self.mode = 'auto'
        self.rec = []; self.ri = 0
    def start_record(self):
        self.mode = 'auto'; self.rec = []
    def start_replay(self, rec):
        self.mode = 'replay'; self.rec = rec; self.ri = 0
    def vm(self, tok):
        assert tok not in self.vq, tok
        self.vq.append(tok); self.done.discard(('v', tok))
    def lds(self, tok):
        assert tok not in self.lq, tok
        self.lq.append(tok); self.done.discard(('l', tok))
    def _apply(self, kind, n):
        q = self.vq if kind == 'v' else self.lq
        while len(q) > n:
            t = q.pop(0); self.done.add((kind, t))
    def _need(self, kind, toks):
        q = self.vq if kind == 'v' else self.lq
        mx = 63 if kind == 'v' else 15
        if self.mode == 'auto':
            n = None
            for tok in toks:
                if tok in q:
                    c = len(q) - 1 - q.index(tok)
                    n = c if n is None else min(n, c)
                else:
                    assert (kind, tok) in self.done, f"token {tok} never issued"
            if n is not None: n = min(n, mx)
            self.rec.append((kind, n))
        else:
            k, n = self.rec[self.ri]; self.ri += 1
            assert k == kind
        if n is not None:
            self._apply(kind, n)
            self.p.I(f"s_waitcnt {'vmcnt' if kind=='v' else 'lgkmcnt'}({n})")
        for tok in toks:
            assert tok not in q and (kind, tok) in self.done, f"wait insufficient for {tok} mode={self.mode} n={n} q={q}"
    def need_vm(self, *toks): self._need('v', toks)
    def need_lds(self, *toks): self._need('l', toks)
    def force_vm(self, n):
        self.p.I(f"s_waitcnt vmcnt({n})"); self._apply('v', n)
    def all_vm(self):
        self.p.I("s_waitcnt vmcnt(0)"); self._apply('v', 0)
    def all_lds(self):
        self.p.I("s_waitcnt lgkmcnt(0)"); self._apply('l', 0)

def circ_color(intervals, period, ncolors):
    def cells(iv):
        s, e = iv
        if e >= s: return set(range(s, e + 1))
        return set(range(s, period)) | set(range(0, e + 1))
    keys = sorted(intervals, key=lambda k: intervals[k][0])
    cs = {k: cells(intervals[k]) for k in keys}
    assign = {}
    used = [set() for _ in range(ncolors)]
    def bt(i):
        if i == len(keys): return True
        k = keys[i]
        for c in range(ncolors):
            if not (used[c] & cs[k]):
                used[c] |= cs[k]; assign[k] = c
                if bt(i + 1): return True
                used[c] -= cs[k]; del assign[k]
        return False
    assert bt(0), "coloring failed"
    return assign


def code_prefetch(P, uniq, nchunks, end, vLane, vtmp, vdum, sq=56, swave=None, target=None, back=False):
    P.I(f"s_getpc_b64 s[{sq}:{sq+1}]")
    P.L(f"{uniq}_pc")
    if target and back:
        P.I(f"s_sub_u32 s{sq}, s{sq}, {uniq}_pc-{target}\ns_subb_u32 s{sq+1}, s{sq+1}, 0")
    elif target:
        P.I(f"s_add_u32 s{sq}, s{sq}, {target}-{uniq}_pc\ns_addc_u32 s{sq+1}, s{sq+1}, 0")
    P.I(f"s_mov_b32 s{sq+2}, {end}-{target if target else uniq + '_pc'}\ns_mov_b32 s{sq+3}, 0x20000")
    P.I(f"v_lshlrev_b32 v{vtmp}, 7, v{vLane}")
    if swave is not None:
        P.I(f"s_lshl_b32 s{sq+4}, s{swave}, 13")
        for k in range((nchunks + 3) // 4):
            if k: P.I(f"s_add_u32 s{sq+4}, s{sq+4}, 32768")
            P.I(f"buffer_load_dword v{vdum}, v{vtmp}, s[{sq}:{sq+3}], s{sq+4} offen")
    else:
        for k in range(nchunks):
            P.I(f"s_mov_b32 s{sq+4}, {k*8192}")
            P.I(f"buffer_load_dword v{vdum}, v{vtmp}, s[{sq}:{sq+3}], s{sq+4} offen")
```

```python
from asmlib import *
import math

C0 = -2.0 * math.sqrt(2.0 / math.pi) * math.log2(math.e)
C1 = C0 * 0.044715
import struct
def f32(x): return "0x%08x" % struct.unpack("<I", struct.pack("<f", x))[0]

WS_H   = 0x0000000
WS_W2  = 0x0400000
WS_WF  = 0x0C00000
WS_WG  = 0x0C80000
WS_WO  = 0x0D00000
WS_F   = 0x0E00000
WS_EA  = 0x1000000
WS_EB  = 0x1400000
WS_FLAG= 0x1410000
OOB = 0x40000000

XB = [0, 36864]
WF = 73728
SCR = 155648

def tap_of(s): return 2 * s if s < 8 else 2 * (s - 8) + 1

def x_slots(nslots=18):
    U = 4; per = 15 * U
    iv = {}
    load_step = {}
    for sg in range(15):
        load_step[(0, sg)] = (11 + sg // 2) if sg < 8 else min((sg - 8) // 2, 3)
        last = min(sg, 7)
        iv[(0, sg)] = (load_step[(0, sg)] * U, last * U + U - 1)
    for sg in range(14):
        load_step[(1, sg)] = (4 + sg // 2) if sg < 8 else 8 + (sg - 8) // 2
        last = 8 + min(sg, 6)
        iv[(1, sg)] = (load_step[(1, sg)] * U, last * U + U - 1)
    col = circ_color(iv, per, nslots)
    return col, load_step

def gelu_pairs(p, regs, tmp, vC0, vC1, vOne):
    n = len(regs)
    for i in range(n): p.I(f"v_pk_mul_f32 v[{tmp[i]}:{tmp[i]+1}], v[{regs[i]}:{regs[i]+1}], v[{regs[i]}:{regs[i]+1}]")
    for i in range(n): p.I(f"v_pk_fma_f32 v[{tmp[i]}:{tmp[i]+1}], v[{tmp[i]}:{tmp[i]+1}], v[{vC1}:{vC1+1}], v[{vC0}:{vC0+1}]")
    for i in range(n): p.I(f"v_pk_mul_f32 v[{tmp[i]}:{tmp[i]+1}], v[{tmp[i]}:{tmp[i]+1}], v[{regs[i]}:{regs[i]+1}]")
    for i in range(n):
        p.I(f"v_exp_f32 v{tmp[i]}, v{tmp[i]}"); p.I(f"v_exp_f32 v{tmp[i]+1}, v{tmp[i]+1}")
    for i in range(n): p.I(f"v_pk_add_f32 v[{tmp[i]}:{tmp[i]+1}], v[{tmp[i]}:{tmp[i]+1}], v[{vOne}:{vOne+1}]")
    for i in range(n):
        p.I(f"v_rcp_f32 v{tmp[i]}, v{tmp[i]}"); p.I(f"v_rcp_f32 v{tmp[i]+1}, v{tmp[i]+1}")
    for i in range(n): p.I(f"v_pk_mul_f32 v[{regs[i]}:{regs[i]+1}], v[{regs[i]}:{regs[i]+1}], v[{tmp[i]}:{tmp[i]+1}]")

WS_STAMP = 0x2000000
class Stamps:
    def __init__(self, P, on, kidx): self.P, self.on, self.k, self.n = P, on, kidx, 0
    def stamp(self, cyc=None):
        if not self.on: return
        i = self.n; self.n += 1
        assert i < 5
        self.P.I(f"s_memrealtime s[{88+2*i}:{89+2*i}]")
        if cyc is not None: self.P.I(f"s_memtime s[{98+2*cyc}:{99+2*cyc}]")
    def flush(self, sWs, sWave):
        if not self.on: return
        P = self.P
        P.I("s_waitcnt lgkmcnt(0)")
        P.I(f"s_add_u32 s56, s{sWs}, {WS_STAMP + self.k*131072}\ns_addc_u32 s57, s{sWs+1}, 0\ns_mov_b32 s58, 131072\ns_mov_b32 s59, 0x20000")
        P.I(f"s_lshl_b32 s60, s2, 8\ns_lshl_b32 s61, s{sWave}, 6\ns_add_u32 s60, s60, s61")
        P.I("s_mov_b64 exec, 1\nv_mov_b32 v1, s60")
        for i in range(self.n):
            P.I(f"v_mov_b32 v2, s{88+2*i}\ns_nop 0")
            P.I(f"buffer_store_dword v2, v1, s[56:59], 0 offen offset:{4*i}\ns_nop 1")
        P.I(f"s_sub_u32 s98, s100, s98\nv_mov_b32 v2, s98\ns_nop 0\nbuffer_store_dword v2, v1, s[56:59], 0 offen offset:32")
        P.I(f"v_mov_b32 v2, {self.n}\ns_nop 0\nbuffer_store_dword v2, v1, s[56:59], 0 offen offset:36")
        P.I("s_waitcnt vmcnt(0)")

def gen_helper(P, name, sWs, sOOB, sflav, hskip=()):
    vLane = 2
    vW = [4, 5, 6, 7]; vWr = [8, 9, 10, 11]; vLin, vPo, vPW, vPX, vDum, vLin8 = 12, 13, 14, 15, 16, 17
    QS, QD, QW, QX = 24, 52, 12, 8
    sSrc, sDst, sT, sHi = 41, 42, 36, 43
    P.L(f"{name}_helper")
    if 'code' not in hskip: code_prefetch(P, name + "_h0", 3, name + "_helper", vLane, 20, vDum, sq=60, target=name, back=True)
    P.I("s_load_dwordx2 s[44:45], s[0:1], 16\ns_load_dwordx4 s[48:51], s[0:1], 32\ns_load_dwordx2 s[46:47], s[0:1], 48")
    P.I(f"s_lshl_b32 s56, s2, 6\nv_add_u32 v20, s56, v{vLane}")
    P.I(f"v_lshrrev_b32 v21, 10, v20\nv_lshlrev_b32 v21, 19, v21\nv_bfe_u32 v22, v20, 3, 7\nv_lshl_add_u32 v21, v22, 10, v21\nv_and_b32 v22, 7, v20\nv_lshl_add_u32 v{vPW}, v22, 7, v21")
    P.I(f"v_lshrrev_b32 v21, 1, v20\nv_lshlrev_b32 v21, 10, v21\nv_and_b32 v22, 1, v20\nv_lshl_add_u32 v{vPX}, v22, 7, v21")
    P.I(f"s_mov_b32 s{QX}, s4\ns_mov_b32 s{QX+1}, s5\ns_mov_b32 s{QX+2}, 8192000\ns_mov_b32 s{QX+3}, 0x20000")
    P.I(f"s_mov_b32 s{QW}, s6\ns_mov_b32 s{QW+1}, s7\ns_mov_b32 s{QW+2}, 7864320\ns_mov_b32 s{QW+3}, 0x20000")
    T = Tracker(P)
    def pf(cc):
        if 'pf' in hskip: return
        P.I(f"s_mov_b32 s{sT}, {cc*131072}\nbuffer_load_dword v{vDum}, v{vPW}, s[{QW}:{QW+3}], s{sT} offen"); T.vm(('PW', cc))
        P.I(f"s_mov_b32 s{sT}, {cc*256}\nbuffer_load_dword v{vDum}, v{vPX}, s[{QX}:{QX+3}], s{sT} offen"); T.vm(('PX', cc))
    pf(0)
    P.I(f"v_lshrrev_b32 v22, 3, v{vLane}\nv_and_b32 v23, 1, v22\nv_lshlrev_b32 v23, 3, v23\nv_bfe_u32 v24, v22, 1, 1\nv_lshl_add_u32 v23, v24, 2, v23")
    P.I(f"v_lshrrev_b32 v24, 2, v22\nv_lshl_add_u32 v23, v24, 4, v23\nv_lshlrev_b32 v23, 10, v23\nv_and_b32 v24, 7, v{vLane}")
    for k in range(4): P.I(f"v_xor_b32 v25, {2*k}, v24\nv_lshl_add_u32 v{vW[k]}, v25, 4, v23")
    P.I(f"v_lshrrev_b32 v3, 4, v{vLane}\nv_and_b32 v20, 15, v{vLane}\nv_lshrrev_b32 v22, 2, v20\nv_and_b32 v23, 3, v20")
    P.I(f"v_and_b32 v24, 1, v3\nv_lshrrev_b32 v25, 1, v3\nv_lshl_add_u32 v24, v25, 2, v24\nv_lshlrev_b32 v24, 7, v24")
    P.I(f"v_lshl_add_u32 v24, v22, 10, v24\nv_lshl_add_u32 v24, v23, 3, v24\nv_add_u32 v24, 98304, v24")
    for m in range(4): P.I(f"v_xor_b32 v25, {m}, v22\nv_lshl_add_u32 v{vWr[m]}, v25, 5, v24")
    P.I(f"v_lshlrev_b32 v{vLin}, 4, v{vLane}\nv_mov_b32 v{vLin8}, v{vLin}")
    P.I(f"v_lshrrev_b32 v21, 1, v3\nv_lshlrev_b32 v21, 11, v21\nv_and_b32 v24, 1, v3\nv_lshl_add_u32 v21, v24, 9, v21\nv_lshl_add_u32 v{vPo}, v20, 4, v21")
    P.I("s_waitcnt lgkmcnt(0)")
    P.I(f"s_mov_b32 s{QD}, s{sWs}\ns_mov_b32 s{QD+1}, s{sWs+1}\ns_mov_b32 s{QD+2}, {WS_F}\ns_mov_b32 s{QD+3}, 0x20000")
    if 'srcw1' in hskip: P.I("s_mov_b32 s44, s6\ns_mov_b32 s45, s7")
    P.I(f"s_mov_b32 s{QS}, s44\ns_mov_b32 s{QS+1}, s45\ns_mov_b32 s{QS+2}, 7864320\ns_mov_b32 s{QS+3}, 0x20000")
    P.I(f"s_lshr_b32 s{sHi}, s2, 7\ns_bfe_u32 s57, s2, 0x40003\ns_and_b32 s58, s2, 7")
    P.I(f"s_lshl_b32 s59, s{sHi}, 19\ns_lshl_b32 s60, s57, 15\ns_add_u32 s59, s59, s60\ns_lshl_b32 s60, s58, 7\ns_add_u32 s{sSrc}, s59, s60")
    P.I(f"s_lshl_b32 s60, s58, 3\ns_and_b32 s61, s57, 3\ns_add_u32 s60, s60, s61\ns_lshl_b32 s60, s60, 2\ns_lshr_b32 s61, s57, 2\ns_add_u32 s60, s60, s61")
    P.I(f"s_mul_i32 s60, s60, 15\ns_lshl_b32 s61, s{sHi}, 3\ns_add_u32 s60, s60, s61\ns_lshl_b32 s60, s60, 11\ns_add_u32 s{sDst}, s60, {WS_W2}")
    HB = 98304
    DO = [64 + 0] * 9
    DOk = lambda k: (60 + 4 * k) if k < 9 else 0
    def issue(k):
        if 'blk' in hskip: return
        DO = {k: [64, 68, 80, 84, 88, 92, 96, 28, 32][k]}
        b = k
        lab = f"{name}_h{k}"
        if k <= 6:
            P.I(f"s_mov_b32 s{DO[b]}, s{sDst}\ns_add_u32 s{DO[b]+1}, s{sDst}, 1024\ns_add_u32 s{DO[b]+2}, s{sDst}, 491520\ns_add_u32 s{DO[b]+3}, s{sDst}, {491520+1024}")
            P.I(f"s_mov_b32 s{sT}, s{sSrc}\ns_add_u32 s{sSrc}, s{sSrc}, 1048576\ns_add_u32 s{sDst}, s{sDst}, 2048")
        elif k == 7:
            P.I(f"s_cmp_ge_u32 s2, 128\ns_cbranch_scc1 {lab}a")
            P.I(f"s_mov_b32 s{DO[b]}, s{sDst}\ns_add_u32 s{DO[b]+1}, s{sDst}, 1024\ns_add_u32 s{DO[b]+2}, s{sDst}, 491520\ns_add_u32 s{DO[b]+3}, s{sDst}, {491520+1024}")
            P.I(f"s_mov_b32 s{sT}, s{sSrc}\ns_branch {lab}b")
            P.L(f"{lab}a")
            P.I(f"s_mov_b32 s{QS}, s48\ns_mov_b32 s{QS+1}, s49\ns_mov_b32 s{QS+2}, 524288")
            P.I(f"s_bfe_u32 s56, s2, 0x40003\ns_and_b32 s58, s2, 7\ns_lshl_b32 s59, s56, 15\ns_lshl_b32 s60, s58, 7\ns_add_u32 s{sT}, s59, s60")
            P.I(f"s_lshl_b32 s59, s58, 16\ns_lshl_b32 s60, s56, 10\ns_add_u32 s59, s59, s60\ns_add_u32 s{DO[b]}, s59, {WS_WF}")
            P.I(f"s_add_u32 s{DO[b]+1}, s{DO[b]}, 16384\ns_add_u32 s{DO[b]+2}, s{DO[b]}, 32768\ns_add_u32 s{DO[b]+3}, s{DO[b]}, 49152")
            P.L(f"{lab}b")
        else:
            P.I(f"s_bfe_u32 s56, s2, 0x40003\ns_and_b32 s58, s2, 7\ns_lshl_b32 s59, s56, 15\ns_lshl_b32 s60, s58, 7\ns_add_u32 s{sT}, s59, s60\ns_lshl_b32 s59, s58, 16")
            P.I(f"s_mov_b32 s{QS+2}, 524288\ns_cmp_ge_u32 s2, 128\ns_cbranch_scc1 {lab}a")
            P.I(f"s_mov_b32 s{QS}, s50\ns_mov_b32 s{QS+1}, s51\ns_lshl_b32 s60, s56, 10\ns_add_u32 s59, s59, s60\ns_add_u32 s{DO[b]}, s59, {WS_WG}")
            P.I(f"s_add_u32 s{DO[b]+1}, s{DO[b]}, 16384\ns_add_u32 s{DO[b]+2}, s{DO[b]}, 32768\ns_add_u32 s{DO[b]+3}, s{DO[b]}, 49152\ns_branch {lab}b")
            P.L(f"{lab}a")
            P.I(f"s_mov_b32 s{QS}, s46\ns_mov_b32 s{QS+1}, s47\ns_lshl_b32 s60, s56, 12\ns_add_u32 s59, s59, s60\ns_add_u32 s{DO[b]}, s59, {WS_WO}")
            P.I(f"s_add_u32 s{DO[b]+1}, s{DO[b]}, 256\ns_add_u32 s{DO[b]+2}, s{DO[b]}, 1024\ns_add_u32 s{DO[b]+3}, s{DO[b]}, 1280\nv_mov_b32 v{vLin8}, v{vPo}")
            P.L(f"{lab}b")
        P.I(f"s_mov_b32 m0, {HB + k*4096}\ns_nop 0")
        for kk in range(4):
            P.I(f"buffer_load_dwordx4 v{vW[kk]}, s[{QS}:{QS+3}], s{sT} offen offset:{kk*1024} lds"); T.vm(('D', k, kk))
    def process(ks):
        if 'blk' in hskip: return
        if 'noproc' in hskip: return
        T.need_vm(*[('D', k, kk) for k in ks for kk in range(4)])
        for k in ks:
            for m in range(4):
                for hh in range(2):
                    r = 32 + (k & 1) * 16 + 4 * m + 2 * hh
                    P.I(f"ds_read_b64_tr_b16 v[{r}:{r+1}], v{vWr[m]} offset:{k*4096 + hh*256}")
        P.I("s_waitcnt lgkmcnt(0)")
    def store(ks):
        if 'blk' in hskip or 'store' in hskip: return
        for k in ks:
            for m in range(4):
                r = 32 + (k & 1) * 16 + 4 * m
                d = [64, 68, 80, 84, 88, 92, 96, 28, 32][k]
                P.I(f"buffer_store_dwordx4 v[{r}:{r+3}], v{vPo if False else (vLin8 if k == 8 else vLin)}, s[{QD}:{QD+3}], s{d+m} offen {sflav}"); T.vm(('S', k, m))
    vPS, vPQ = 18, 19
    P.I(f"s_lshl_b32 s56, s2, 6\nv_add_u32 v20, s56, v{vLane}\nv_lshlrev_b32 v{vPS}, 7, v20")
    P.I(f"s_lshl_b32 s56, s2, 4\nv_and_b32 v20, 15, v{vLane}\nv_add_u32 v20, s56, v20\nv_lshlrev_b32 v{vPQ}, 7, v20")
    P.I(f"s_mov_b32 s72, s44\ns_mov_b32 s73, s45\ns_mov_b32 s74, 7864320\ns_mov_b32 s75, 0x20000")
    def ps(q):
        if 'pf' in hskip: return
        P.I(f"s_mov_b32 s{sT}, {q << 21}\nbuffer_load_dword v{vDum}, v{vPS}, s[72:75], s{sT} offen"); T.vm(('PS', q))
    def pq():
        if 'pf' in hskip: return
        for n_, lo in enumerate((48, 50, 46)):
            P.I(f"s_mov_b32 s76, s{lo}\ns_mov_b32 s77, s{lo+1}\ns_mov_b32 s78, 524288\ns_mov_b32 s79, 0x20000")
            P.I(f"buffer_load_dword v{vDum}, v{vPQ}, s[76:79], 0 offen"); T.vm(('PQ', n_))
    B = lambda: P.I("s_barrier")
    B()
    pf(1); B()
    B()
    pf(2); B()
    B()
    pf(3); B()
    B(); B(); B()
    for q in range(4): ps(q)
    pq()
    if 'code' not in hskip:
        P.I(f"s_cmp_ge_u32 s2, 8\ns_cbranch_scc1 {name}_h_nocode")
        code_prefetch(P, name + "_h1", 4, "joint_kernel_slow", vLane, 20, vDum, sq=60, target="conv2_kernel")
        P.L(f"{name}_h_nocode")
    B()
    for k in range(9): issue(k)
    B()
    for k in range(9):
        process([k]); store([k])
    P.I("s_waitcnt vmcnt(0)\ns_endpgm")


def gen_conv(p, which, name, oflav="sc1", stamps=False, D2=8, pdbg=False, sflav="sc1", itdbg=False, helper=True, hskip=(), cpf=None):
    P = p
    K1 = which == 1
    ST = Stamps(P, stamps, which - 1)
    nD = 4 if K1 else 2
    NM = 8 * nD
    xcol, xload = x_slots()
    XBUF = 36864
    vLane = 2
    vXpat = [4, 5, 6, 7]; vK0 = [8, 9]; vXr = [10, 11]; vW = [12, 13, 14, 15]; vWr = [16, 17, 18, 19]
    vW2 = 12
    ACC = 40
    BLK = 8 * nD
    def acc(n, m): return ACC + (n * nD + m) * 4
    def aX(e, sg): return xcol[(e, sg)] * 4
    AW = 72
    def aW(m): return AW + 4 * m
    def aW2(S, m): return AW + ((S % 15) * 2 + m) * 4
    sSRDX, sSRDW, sSRDH = 8, 12, 16
    sWs = 20
    sW_, sWbase, sWnext, sXa, sXb, sXlds, sWlds, sIt, sT, sOOB = 28, 29, 30, 31, 32, 33, 34, 35, 36, 37
    sT0, sD0, sB, sDelta = 38, 39, 40, 62
    P.raw(f".globl {name}\n.p2align 8\n.type {name},@function\n{name}:")
    P.I("s_cmp_ge_u32 s2, 256"); P.I(f"s_cbranch_scc1 {name}_end")
    ST.stamp()
    if K1: P.I("s_load_dwordx4 s[4:7], s[0:1], 0")
    P.I(f"s_load_dwordx2 s[{sWs}:{sWs+1}], s[0:1], 72")
    P.I(f"v_lshrrev_b32 v1, 6, v0\nv_and_b32 v{vLane}, 63, v0")
    P.I(f"s_and_b32 s41, s2, 7\ns_lshr_b32 s42, s2, 3")
    P.I(f"v_readfirstlane_b32 s{sW_}, v1")
    if cpf is None: cpf = 0 if K1 else 12288
    if cpf: code_prefetch(P, name, 4, name + '_end', vLane, 5, 33, sq=56, swave=sW_)
    if K1:
        P.I("s_and_b32 s43, s41, 1\ns_lshl_b32 s43, s43, 2\ns_and_b32 s44, s42, 3\ns_add_u32 s43, s43, s44")
        P.I("s_lshr_b32 s45, s41, 1\ns_lshl_b32 s45, s45, 3\ns_lshr_b32 s46, s42, 2\ns_add_u32 s45, s45, s46")
        P.I(f"s_lshr_b32 s{sB}, s45, 4\ns_and_b32 s45, s45, 15\ns_mul_i32 s{sT0}, s45, 125\ns_lshl_b32 s{sD0}, s43, 7")
    else:
        P.I("s_lshr_b32 s43, s41, 1\ns_lshl_b32 s43, s43, 2\ns_and_b32 s44, s42, 3\ns_add_u32 s43, s43, s44")
        P.I(f"s_and_b32 s{sB}, s41, 1\ns_lshr_b32 s45, s42, 2\ns_mul_i32 s{sT0}, s45, 125\ns_lshl_b32 s{sD0}, s43, 6")
    P.I(f"s_mov_b32 s{sOOB}, {OOB}")
    P.I("s_waitcnt lgkmcnt(0)")
    if K1 and helper:
        P.I(f"s_cmp_eq_u32 s{sW_}, 4\ns_cbranch_scc1 {name}_helper")
    if K1:
        P.I(f"s_mul_i32 s46, s{sB}, 4096000")
        P.I(f"s_add_u32 s{sSRDX}, s4, s46\ns_addc_u32 s{sSRDX+1}, s5, 0\ns_mov_b32 s{sSRDX+2}, 4096000\ns_mov_b32 s{sSRDX+3}, 0x20000")
        P.I(f"s_mov_b32 s{sSRDW}, s6\ns_mov_b32 s{sSRDW+1}, s7\ns_mov_b32 s{sSRDW+2}, 7864320\ns_mov_b32 s{sSRDW+3}, 0x20000")
        P.I(f"s_mul_i32 s46, s{sB}, 2048000\ns_add_u32 s46, s46, {WS_H}")
        P.I(f"s_add_u32 s{sSRDH}, s{sWs}, s46\ns_addc_u32 s{sSRDH+1}, s{sWs+1}, 0\ns_mov_b32 s{sSRDH+2}, 2048000\ns_mov_b32 s{sSRDH+3}, 0x20000")
    else:
        P.I(f"s_mul_i32 s46, s{sB}, 2048000\ns_add_u32 s46, s46, {WS_H}")
        P.I(f"s_add_u32 s{sSRDX}, s{sWs}, s46\ns_addc_u32 s{sSRDX+1}, s{sWs+1}, 0\ns_mov_b32 s{sSRDX+2}, 2048000\ns_mov_b32 s{sSRDX+3}, 0x20000")
        P.I(f"s_lshl_b32 s46, s43, 2\ns_add_u32 s46, s46, s{sW_}\ns_mul_i32 s46, s46, 122880\ns_add_u32 s46, s46, {WS_W2}")
        P.I(f"s_add_u32 s{sSRDW}, s{sWs}, s46\ns_addc_u32 s{sSRDW+1}, s{sWs+1}, 0\ns_mov_b32 s{sSRDW+2}, 122880\ns_mov_b32 s{sSRDW+3}, 0x20000")
        P.I(f"s_mul_i32 s46, s{sB}, 1024000\ns_add_u32 s46, s46, {WS_F}")
        P.I(f"s_add_u32 s{sSRDH}, s{sWs}, s46\ns_addc_u32 s{sSRDH+1}, s{sWs+1}, 0\ns_mov_b32 s{sSRDH+2}, 1024000\ns_mov_b32 s{sSRDH+3}, 0x20000")
    P.I(f"s_lshl_b32 s46, s{sT0}, 11\ns_lshl_b32 s47, s{sW_}, 13\ns_add_u32 s46, s46, s47\ns_sub_u32 s{sXa}, s46, 8192")
    P.I(f"s_cmp_eq_u32 s46, 0")
    P.I(f"s_cselect_b32 s{sXb}, 0, s{sXa}\ns_cselect_b32 s48, 1, 0")
    P.I(f"s_lshl_b32 s{sXlds}, s{sW_}, 10")
    P.I(f"v_lshrrev_b32 v3, 4, v{vLane}")
    P.I(f"v_and_b32 v20, 15, v{vLane}")
    P.I(f"v_lshlrev_b32 v21, 11, v3\nv_add_u32 v21, 1024, v21")
    P.I(f"s_lshr_b32 s49, s{sW_}, 1")
    for kk in range(4):
        P.I(f"s_add_u32 s50, s49, {2*kk}\ns_and_b32 s50, s50, 7\ns_lshl_b32 s50, s50, 1")
        P.I(f"v_xor_b32 v22, s50, v20\nv_lshl_add_u32 v{vXpat[kk]}, v22, 4, v21")
    P.I(f"v_mov_b32 v{vK0[0]}, v{vXpat[0]}\nv_add_u32 v{vK0[1]}, 1024, v{vXpat[0]}")
    P.I(f"s_cmp_eq_u32 s48, 0\ns_cbranch_scc1 {name}_nospecial")
    P.I(f"v_mov_b32 v{vK0[0]}, s{sOOB}\nv_lshlrev_b32 v22, 4, v20\nv_mov_b32 v23, s{sOOB}")
    P.I(f"v_cmp_eq_u32 vcc, 3, v3\ns_nop 1\nv_cndmask_b32 v{vK0[1]}, v23, v22, vcc")
    P.L(f"{name}_nospecial")
    T = Tracker(P)
    def xdma(e, k, it, bufoff=0):
        def setup():
            P.I(f"s_add_u32 m0, s{sXlds}, {e*XBUF + k*4096 + bufoff}")
            if k: P.I(f"s_add_u32 s{sT}, s{sXa}, {e*1024 + k*32768}")
            else: P.I("s_nop 0")
        def go():
            if k: P.I(f"buffer_load_dwordx4 v{vXpat[k&3]}, s[{sSRDX}:{sSRDX+3}], s{sT} offen lds")
            else: P.I(f"buffer_load_dwordx4 v{vK0[e]}, s[{sSRDX}:{sSRDX+3}], s{sXb} offen lds")
            T.vm(('X', it, e, k))
        return setup, go
    if pdbg: ST.stamp()
    for k in range(9):
        s_, g_ = xdma(0, k, 0); s_(); g_()
    if K1:
        P.I(f"s_mul_i32 s{sWlds}, s{sW_}, 20480\ns_add_u32 s{sWlds}, s{sWlds}, {WF}")
        P.I(f"s_lshl_b32 s{sWbase}, s{sW_}, 15\ns_add_u32 s{sWbase}, s{sWbase}, s{sD0}\ns_add_u32 s{sWnext}, s{sWbase}, 131072")
        P.I(f"v_lshrrev_b32 v22, 3, v{vLane}")
        P.I(f"v_and_b32 v23, 1, v22\nv_lshlrev_b32 v23, 3, v23")
        P.I(f"v_bfe_u32 v24, v22, 1, 1\nv_lshl_add_u32 v23, v24, 2, v23")
        P.I(f"v_lshrrev_b32 v24, 2, v22\nv_lshl_add_u32 v23, v24, 4, v23")
        P.I(f"v_lshlrev_b32 v23, 10, v23\nv_and_b32 v24, 7, v{vLane}")
        for k in range(4):
            P.I(f"v_xor_b32 v25, {2*k}, v24\nv_lshl_add_u32 v{vW[k]}, v25, 4, v23")
    else:
        P.I(f"v_lshlrev_b32 v{vW2}, 4, v{vLane}\ns_mov_b32 s{sWbase}, 0")
    def wdma_setup(S):
        def f():
            s = S % 15
            cur = S < 5 or (S // 15) == ((S - 5) // 15)
            base = sWbase if cur else sWnext
            P.I(f"s_add_u32 m0, s{sWlds}, {(S % 5) * 4096}")
            P.I(f"s_add_u32 s{sT}, s{base}, {tap_of(s) * 524288}")
        return f
    def wdma(S, k):
        def f():
            P.I(f"buffer_load_dwordx4 v{vW[k]}, s[{sSRDW}:{sSRDW+3}], s{sT} offen offset:{k*1024} lds")
            T.vm(('W', S, k))
        return f
    def wload2(S, m):
        def f():
            r = aW2(S, m)
            P.I(f"buffer_load_dwordx4 a[{r}:{r+3}], v{vW2}, s[{sSRDW}:{sSRDW+3}], s{sWbase} offen offset:{m*1024}")
            T.vm(('W', S, m))
            if m == 1: P.I(f"s_add_u32 s{sWbase}, s{sWbase}, 2048")
        return f
    def wread(S, m, hh):
        def f():
            P.I(f"ds_read_b64_tr_b16 a[{aW(m)+2*hh}:{aW(m)+2*hh+1}], v{vWr[m]} offset:{(S%5)*4096 + hh*256}")
            T.lds(('W', S, m, hh))
        return f
    def xread(it, e, sg):
        def f():
            r = aX(e, sg)
            P.I(f"ds_read_b128 a[{r}:{r+3}], v{vXr[sg>>3]} offset:{e*XBUF + sg*256}")
            T.lds(('X', it, e, sg))
        return f
    if K1:
        for S in range(5):
            if S in (1, 2):
                for k in (range(0, 5) if S == 1 else range(5, 9)):
                    s_, g_ = xdma(1, k, 0); s_(); g_()
            wdma_setup(S)()
            for k in range(4): wdma(S, k)()
        XA = 1
    else:
        XA = 2
        for S in range(D2):
            if S == 1:
                for k in range(9):
                    s_, g_ = xdma(1, k, 0); s_(); g_()
            for m in range(2): wload2(S, m)()
        P.I(f"s_add_u32 s{sXa}, s{sXa}, 256\ns_add_u32 s{sXb}, s{sXb}, 256")
        for e in range(2):
            for k in range(9):
                s_, g_ = xdma(e, k, 1, bufoff=2*XBUF); s_(); g_()
        P.I(f"s_mov_b32 s{sDelta}, {2*XBUF}")
    P.I(f"s_add_u32 s{sXa}, s{sXa}, 256\ns_add_u32 s{sXb}, s{sXb}, 256\ns_mov_b32 s{sIt}, 0")
    P.I(f"s_lshl_b32 s50, s{sW_}, 2\nv_add_u32 v22, s50, v3")
    for h in range(2):
        P.I(f"v_add_u32 v23, {h}, v20\nv_and_b32 v23, 7, v23\nv_lshlrev_b32 v23, 1, v23\nv_xor_b32 v23, v23, v22\nv_lshlrev_b32 v23, 4, v23")
        P.I(f"v_lshl_add_u32 v{vXr[h]}, v20, 11, v23")
    if K1:
        P.I(f"v_lshrrev_b32 v22, 2, v20\nv_and_b32 v23, 3, v20")
        P.I(f"v_and_b32 v24, 1, v3\nv_lshrrev_b32 v25, 1, v3\nv_lshl_add_u32 v24, v25, 2, v24\nv_lshlrev_b32 v24, 7, v24")
        P.I(f"v_lshl_add_u32 v24, v22, 10, v24\nv_lshl_add_u32 v24, v23, 3, v24\nv_add_u32 v24, s{sWlds}, v24")
        for m in range(4):
            P.I(f"v_xor_b32 v25, {m}, v22\nv_lshl_add_u32 v{vWr[m]}, v25, 5, v24")
    for i in range(8 * nD * 4): P.I(f"v_mov_b32 v{ACC+i}, 0")
    if pdbg: ST.stamp()
    T.need_vm(*[('X', 0, 0, k) for k in range(9)])
    if pdbg: ST.stamp()
    P.I("s_barrier")
    for sg in range(8): xread(0, 0, sg)()
    if K1:
        T.need_vm(*[('W', 0, k) for k in range(4)])
        for m in range(3):
            for hh in range(2): wread(0, m, hh)()
    T.all_lds()
    def body(it, last=False):
        for s in range(15):
            S = it * 15 + s
            e = 0 if s < 8 else 1; j = s if s < 8 else s - 8
            fill = [[] for _ in range(NM)]
            xr = sorted([(ee, sg) for (ee, sg), st in xload.items() if st == s])
            if K1:
                fill[0].append(wread(S, 3, 0)); fill[1].append(wread(S, 3, 1))
                fill[8].append(lambda S=S: T.need_vm(*[('W', S + 1, k) for k in range(4)]))
                fill[9].append(wread(S + 1, 0, 0)); fill[10].append(wread(S + 1, 0, 1))
                fill[16].append(wread(S + 1, 1, 0)); fill[17].append(wread(S + 1, 1, 1))
                fill[24].append(wread(S + 1, 2, 0)); fill[25].append(wread(S + 1, 2, 1))
                if not (last and s >= 10):
                    fill[18].append(wdma_setup(S + 5))
                    fill[19].append(lambda S=S: T.need_lds(('W', S, 3, 0), ('W', S, 3, 1)))
                    for k, pos in enumerate((20, 22, 26, 28)): fill[pos].append(wdma(S + 5, k))
                if last and s == 14:
                    for pos in (8, 9, 10, 16, 17, 24, 25): fill[pos] = []
                xpos = (12, 14, 3, 5)
                xd = {4: (0, range(0, 5)), 5: (0, range(5, 9)), 11: (1, range(0, 5)), 12: (1, range(5, 9))}
                xdp = ((2, 3), (4, 5), (6, 7), (11, 13), (14, 15))
            else:
                fill[1].append(wload2(S + D2, 0)); fill[9].append(wload2(S + D2, 1))
                xpos = (3, 11, 6, 14)
                xd = {4: (0, range(0, 3)), 5: (0, range(3, 6)), 6: (0, range(6, 9)), 11: (1, range(0, 3)), 12: (1, range(3, 6)), 13: (1, range(6, 9))}
                xdp = ((4, 5), (7, 8), (12, 13))
            for (ee, sg), pos in zip(xr, xpos):
                iit = it + 1 if (ee == 0 and sg < 8) else it
                if last and iit > it: continue
                fill[pos].append(xread(iit, ee, sg))
            if s in xd and not last:
                ee, ks = xd[s]
                for k, (ps, pg) in zip(ks, xdp):
                    s_, g_ = xdma(ee, k, it + XA)
                    fill[ps].append(s_); fill[pg].append(g_)
            if s == 14 and not last:
                fill[2].append(lambda: P.I(f"s_add_u32 s{sIt}, s{sIt}, 1"))
                if K1:
                    fill[29].append(lambda: P.I(f"s_add_u32 s{sWbase}, s{sWbase}, 131072\ns_add_u32 s{sWnext}, s{sWnext}, 131072"))
                    fill[30].append(lambda: P.I(f"s_add_u32 s{sXa}, s{sXa}, 256\ns_add_u32 s{sXb}, s{sXb}, 256"))
                else:
                    fill[13].append(lambda: P.I(f"s_add_u32 s{sXa}, s{sXa}, 256\ns_add_u32 s{sXb}, s{sXb}, 256"))
                    fill[14].append(lambda: P.I(f"s_xor_b32 s{sXlds}, s{sXlds}, s63"))
                    fill[15].append(lambda: P.I(f"s_cmp_ge_u32 s{sIt}, 2\ns_cselect_b32 s{sXa}, s{sOOB}, s{sXa}\ns_cselect_b32 s{sXb}, s{sOOB}, s{sXb}"))
            for pp in range(NM):
                m, n = pp >> 3, pp & 7
                if K1:
                    if n == 0: T.need_lds(('W', S, m, 0), ('W', S, m, 1))
                    wa = aW(m)
                else:
                    if n == 0: T.need_vm(('W', S, m))
                    wa = aW2(S, m)
                if m == 0: T.need_lds(('X', it, e, j + n))
                a = acc(n, m); x = aX(e, j + n)
                P.I(f"v_mfma_f32_16x16x32_bf16 v[{a}:{a+3}], a[{wa}:{wa+3}], a[{x}:{x+3}], v[{a}:{a+3}]")
                for f in fill[pp]: f()
            if s in (3, 10):
                T.all_lds()
                if s == 3: T.need_vm(*[('X', it, 1, k) for k in range(9)])
                elif not last: T.need_vm(*[('X', it + 1, 0, k) for k in range(9)])
                P.I("s_barrier")
                if s == 10 and not K1:
                    P.I(f"v_add_u32 v{vXr[0]}, s{sDelta}, v{vXr[0]}\nv_add_u32 v{vXr[1]}, s{sDelta}, v{vXr[1]}\ns_sub_u32 s{sDelta}, 0, s{sDelta}")
    if not K1:
        P.I(f"s_add_u32 s63, s{sXlds}, {2*XBUF}\ns_xor_b32 s63, s63, s{sXlds}")
    st0 = (list(T.vq), list(T.lq), set(T.done))
    P.on = False
    T.start_record(); body(0); body(1)
    T.start_record(); body(2); rec = list(T.rec)
    T.vq, T.lq, T.done = list(st0[0]), list(st0[1]), set(st0[2])
    P.on = True
    ST.stamp(0)
    P.L(f"{name}_loop")
    T.start_replay(rec); body(0)
    P.on = False
    NLOOP = 3 if K1 else 4
    for it in range(1, NLOOP):
        T.start_replay(rec); body(it)
    P.on = True
    if itdbg:
        P.I("s_memrealtime s[98:99]\ns_waitcnt lgkmcnt(0)")
        for k in range(1, 4):
            P.I(f"s_cmp_eq_u32 s{sIt}, {k}\ns_cselect_b32 s{90+2*k}, s98, s{90+2*k}")
        ST.n = 5
    P.I(f"s_cmp_lt_u32 s{sIt}, {NLOOP}\ns_cbranch_scc1 {name}_loop")
    if K1:
        T.start_record(); body(3, last=True)
    if pdbg: P.I("s_memtime s[100:101]")
    elif itdbg: pass
    else: ST.stamp(1)
    NT = 2 * nD
    RS = 3 * NT * 1024
    vA, vT, vR = 20, 21, 22
    P.I(f"v_lshlrev_b32 v{vA}, 4, v{vLane}\nv_add_u32 v{vT}, 0x10000, v{vA}")
    P.I(f"s_mul_i32 s41, s{sW_}, {RS}\nv_add_u32 v{vR}, s41, v{vA}")
    vC0, vC1, vOne = 24, 26, 28
    P.I(f"v_mov_b32 v{vC0}, {f32(C0)}\nv_mov_b32 v{vC0+1}, {f32(C0)}\nv_mov_b32 v{vC1}, {f32(C1)}\nv_mov_b32 v{vC1+1}, {f32(C1)}")
    P.I(f"v_mov_b32 v{vOne}, 1.0\nv_mov_b32 v{vOne+1}, 1.0")
    vTw = [4, 5, 6, 7]; vHs = 8
    RB = 32 * nD
    xm = 7 if K1 else 3
    P.I(f"v_and_b32 v10, 15, v{vLane}\nv_lshrrev_b32 v11, 4, v{vLane}\nv_and_b32 v12, {xm}, v10\nv_lshlrev_b32 v12, 1, v12")
    P.I(f"v_mul_u32_u24 v13, {RB}, v10\nv_add_u32 v13, s41, v13")
    for m in range(nD):
        P.I(f"v_add_u32 v14, {4*m}, v11\nv_xor_b32 v14, v14, v12\nv_lshl_add_u32 v{vTw[m]}, v14, 3, v13")
    if K1:
        P.I(f"v_lshrrev_b32 v10, 3, v{vLane}\nv_and_b32 v11, 7, v{vLane}\nv_xor_b32 v11, v11, v10\nv_lshlrev_b32 v11, 4, v11")
        P.I(f"v_lshl_add_u32 v{vHs}, v10, 13, v11")
    else:
        P.I(f"v_lshrrev_b32 v10, 2, v{vLane}\nv_xor_b32 v11, v10, v{vLane}\nv_and_b32 v11, 3, v11\nv_lshlrev_b32 v11, 4, v11")
        P.I(f"v_lshl_add_u32 v{vHs}, v10, 13, v11")
    P.I("s_waitcnt vmcnt(0) lgkmcnt(0)\ns_barrier")
    for w in range(4):
        P.I(f"s_cmp_lg_u32 s{sW_}, {w}\ns_cbranch_scc1 {name}_red{w}")
        for w2 in range(4):
            if w2 == w: continue
            idx = (w ^ w2) - 1
            for t in range(NT):
                a = ACC + w2 * BLK + 4 * t
                off = w2 * RS + idx * NT * 1024 + t * 1024
                if off < 65536: P.I(f"ds_write_b128 v{vA}, v[{a}:{a+3}] offset:{off}")
                else: P.I(f"ds_write_b128 v{vT}, v[{a}:{a+3}] offset:{off-65536}")
        P.I("s_waitcnt lgkmcnt(0)\ns_barrier")
        for idx in range(3):
            for t in range(NT):
                r = ACC + (w ^ (idx + 1)) * BLK + 4 * t
                P.I(f"ds_read_b128 v[{r}:{r+3}], v{vR} offset:{idx*NT*1024 + t*1024}")
        P.I(f"s_branch {name}_redd")
        P.L(f"{name}_red{w}")
    P.L(f"{name}_redd")
    P.I("s_waitcnt lgkmcnt(0)")
    OWN = ACC
    def pk_add(d, a, b): P.I(f"v_pk_add_f32 v[{d}:{d+1}], v[{a}:{a+1}], v[{b}:{b+1}]")
    for i in range(0, BLK, 2): pk_add(ACC + i, ACC + i, ACC + BLK + i)
    for i in range(0, BLK, 2): pk_add(ACC + 2*BLK + i, ACC + 2*BLK + i, ACC + 3*BLK + i)
    for i in range(0, BLK, 2): pk_add(ACC + i, ACC + i, ACC + 2*BLK + i)
    TMP = ACC + BLK
    for g in range(BLK // 16):
        gelu_pairs(P, [OWN + 16*g + 2*i for i in range(8)], [TMP + 16*g + 2*i for i in range(8)], vC0, vC1, vOne)
    PK = ACC + 2 * BLK
    for t in range(NT):
        P.I(f"v_cvt_pk_bf16_f32 v{PK+2*t}, v{OWN+4*t}, v{OWN+4*t+1}\nv_cvt_pk_bf16_f32 v{PK+2*t+1}, v{OWN+4*t+2}, v{OWN+4*t+3}")
    for t in range(NT):
        nn, m = t // nD, t % nD
        P.I(f"ds_write_b64 v{vTw[m]}, v[{PK+2*t}:{PK+2*t+1}] offset:{nn*16*RB}")
    P.I("s_waitcnt lgkmcnt(0)")
    NS = nD
    for i in range(NS): P.I(f"ds_read_b128 v[{TMP+4*i}:{TMP+4*i+3}], v{vR} offset:{i*1024}")
    P.I(f"s_lshl_b32 s42, s{sW_}, 1\ns_add_u32 s42, s42, s{sT0}\ns_lshl_b32 s42, s42, 10\ns_add_u32 s42, s42, s{sD0}")
    for i in range(NS):
        off = ((i >> 1) + 64 * (i & 1)) * 1024 if K1 else i * 1024
        P.I(f"s_add_u32 s{sT}, s42, {off}")
        P.I(f"s_waitcnt lgkmcnt({NS-1-i})")
        P.I(f"buffer_store_dwordx4 v[{TMP+4*i}:{TMP+4*i+3}], v{vHs}, s[{sSRDH}:{sSRDH+3}], s{sT} offen {oflav}")
    if not pdbg and not itdbg: ST.stamp()
    P.I("s_waitcnt vmcnt(0)")
    if not pdbg and not itdbg: ST.stamp()
    ST.flush(sWs, sW_)
    P.L(f"{name}_end")
    P.I("s_endpgm")
    if K1 and helper: gen_helper(P, name, sWs, sOOB, sflav, hskip)

def kernel_desc(name, vgpr, accum, sgpr=102):
    return f""".p2align 6
.amdhsa_kernel {name}
  .amdhsa_next_free_vgpr {vgpr}
  .amdhsa_next_free_sgpr {sgpr}
  .amdhsa_accum_offset {accum}
  .amdhsa_group_segment_fixed_size 0
  .amdhsa_kernarg_size 80
  .amdhsa_user_sgpr_count 2
  .amdhsa_user_sgpr_kernarg_segment_ptr 1
  .amdhsa_system_sgpr_workgroup_id_x 1
  .amdhsa_float_denorm_mode_32 3
.end_amdhsa_kernel
"""
```

```python
from asmlib import *
from conv import *

CC = 2.0 * math.log2(math.e)
WS_CA = WS_EA
WS_CB = WS_EB

WS_FLAGS = WS_FLAG

def gen_proj(P, name="proj_kernel", stamps=False, kidx=2, oflav="sc1", cpf=8192):
    ST = Stamps(P, stamps, kidx)
    vLane = 2
    sWs, sW_ = 20, 28
    sSRDA, sSRDW, sSRDO = 8, 12, 16
    P.raw(f".globl {name}\n.p2align 8\n.type {name},@function\n{name}:")
    P.I("s_cmp_ge_u32 s2, 264"); P.I(f"s_cbranch_scc1 {name}_end")
    ST.stamp()
    P.I(f"s_load_dwordx2 s[{sWs}:{sWs+1}], s[0:1], 72\ns_load_dwordx2 s[4:5], s[0:1], 24")
    P.I(f"v_lshrrev_b32 v1, 6, v0\nv_and_b32 v{vLane}, 63, v0")
    P.I("s_cmp_lt_u32 s2, 8\ns_cselect_b32 s46, 1, 0\ns_sub_u32 s40, s2, 8")
    P.I("s_and_b32 s41, s40, 7\ns_lshr_b32 s42, s40, 3")
    P.I(f"v_readfirstlane_b32 s{sW_}, v1")
    if cpf: code_prefetch(P, name, 4, name + '_end', vLane, 5, 30, sq=60, swave=sW_)
    P.I("s_and_b32 s43, s42, 7\ns_lshr_b32 s44, s42, 3\ns_lshl_b32 s45, s41, 2\ns_add_u32 s44, s44, s45")
    P.I("s_cmp_eq_u32 s46, 1\ns_cselect_b32 s43, s2, s43\ns_cselect_b32 s44, 0, s44")
    P.I("s_waitcnt lgkmcnt(0)")
    P.I(f"s_add_u32 s48, s{sWs}, {WS_F}\ns_addc_u32 s49, s{sWs+1}, 0")
    P.I(f"s_cmp_eq_u32 s46, 1\ns_cselect_b32 s{sSRDA}, s4, s48\ns_cselect_b32 s{sSRDA+1}, s5, s49\ns_mov_b32 s{sSRDA+2}, 2048000\ns_cselect_b32 s{sSRDA+2}, 16384, s{sSRDA+2}\ns_mov_b32 s{sSRDA+3}, 0x20000")
    P.I(f"s_mov_b32 s47, {WS_WF}\ns_cselect_b32 s47, {WS_WG}, s47")
    P.I(f"s_lshl_b32 s48, s43, 2\ns_add_u32 s48, s48, s{sW_}\ns_lshl_b32 s48, s48, 14\ns_add_u32 s47, s47, s48")
    P.I(f"s_add_u32 s{sSRDW}, s{sWs}, s47\ns_addc_u32 s{sSRDW+1}, s{sWs+1}, 0\ns_mov_b32 s{sSRDW+2}, 16384\ns_mov_b32 s{sSRDW+3}, 0x20000")
    vP = [4 + i for i in range(8)]
    P.I(f"v_lshlrev_b32 v3, 4, v{vLane}")
    for q in range(8): P.I(f"v_xor_b32 v{vP[q]}, {32*q}, v3")
    P.I(f"s_lshl_b32 s48, s44, 6\ns_lshl_b32 s49, s{sW_}, 4\ns_add_u32 s48, s48, s49\ns_lshl_b32 s48, s48, 10")
    P.I(f"s_lshl_b32 s50, s{sW_}, 14")
    T = Tracker(P)
    def wl(ks):
        if ks % 4 == 0: P.I(f"s_mov_b32 s37, {ks*1024}")
        P.I(f"buffer_load_dwordx4 a[{4*ks}:{4*ks+3}], v3, s[{sSRDW}:{sSRDW+3}], s37 offen offset:{(ks&3)*1024}")
        T.vm(('W', ks))
    for k in range(16):
        P.I(f"s_add_u32 m0, s50, {k*1024}\ns_add_u32 s36, s48, {k*1024}")
        P.I(f"buffer_load_dwordx4 v{vP[k&7]}, s[{sSRDA}:{sSRDA+3}], s36 offen lds")
        T.vm(('F', k))
        if k >= 12: wl(k - 12)
    for ks in range(4, 16): wl(ks)
    P.I(f"s_cmp_eq_u32 s46, 1\ns_mov_b32 s47, {WS_CA}\ns_mov_b32 s{sSRDO+2}, 4096000\ns_cselect_b32 s47, {WS_CB}, s47\ns_cselect_b32 s{sSRDO+2}, 32768, s{sSRDO+2}")
    P.I(f"s_add_u32 s{sSRDO}, s{sWs}, s47\ns_addc_u32 s{sSRDO+1}, s{sWs+1}, 0\ns_mov_b32 s{sSRDO+3}, 0x20000")
    vB = [12, 13, 14, 15]
    P.I(f"v_and_b32 v16, 15, v{vLane}\nv_lshrrev_b32 v17, 4, v{vLane}\nv_and_b32 v18, 7, v16\nv_lshlrev_b32 v18, 1, v18\nv_lshlrev_b32 v19, 10, v16")
    for q in range(4):
        P.I(f"v_add_u32 v20, {4*q}, v17\nv_xor_b32 v20, v20, v18\nv_lshl_add_u32 v{vB[q]}, v20, 4, v19")
    vOw, vOr, vO = 21, 23, 24
    P.I(f"s_lshl_b32 s52, s{sW_}, 2\nv_add_u32 v20, s52, v17\nv_xor_b32 v20, v20, v16\nv_lshlrev_b32 v20, 4, v20\nv_lshl_add_u32 v{vOw}, v16, 8, v20")
    P.I(f"s_lshl_b32 s52, s{sW_}, 12\nv_add_u32 v{vOr}, s52, v3")
    vO4 = [24, 25, 26, 27]
    for i in range(4):
        P.I(f"v_add_u32 v20, {4*i}, v17\nv_xor_b32 v28, v20, v16\nv_lshlrev_b32 v28, 4, v28\nv_lshl_add_u32 v{vO4[i]}, v20, 11, v28")
    P.I(f"s_lshl_b32 s51, s44, 6\ns_lshl_b32 s52, s{sW_}, 4\ns_add_u32 s51, s51, s52\ns_lshl_b32 s51, s51, 11\ns_lshl_b32 s52, s43, 8\ns_add_u32 s51, s51, s52")
    ACC = 32
    for i in range(16): P.I(f"v_mov_b32 v{ACC+i}, 0")
    P.I(f"v_mov_b32 v22, {f32(CC)}")
    ST.stamp(0)
    T.need_vm(*[('F', k) for k in range(16)])
    P.I("s_barrier")
    RING = 64
    def rd(ks, n):
        r = RING + ((ks * 4 + n) % 16) * 4
        P.I(f"ds_read_b128 v[{r}:{r+3}], v{vB[ks&3]} offset:{(ks>>2)*256 + n*16384}")
        T.lds((ks, n))
    for ks in range(3):
        for n in range(4): rd(ks, n)
    for ks in range(16):
        T.need_vm(('W', ks))
        for n in range(4):
            T.need_lds((ks, n))
            r = RING + ((ks * 4 + n) % 16) * 4
            P.I(f"v_mfma_f32_16x16x32_bf16 v[{ACC+4*n}:{ACC+4*n+3}], a[{4*ks}:{4*ks+3}], v[{r}:{r+3}], v[{ACC+4*n}:{ACC+4*n+3}]")
            if ks + 3 < 16: rd(ks + 3, n)
    ST.stamp(1)
    P.I("s_barrier")
    P.I("s_nop 4")
    for i in range(16): P.I(f"v_mul_f32 v{ACC+i}, v22, v{ACC+i}")
    for n in range(4): P.I(f"ds_write_b128 v{vOw}, v[{ACC+4*n}:{ACC+4*n+3}] offset:{n*4096}")
    P.I("v_mov_b32 v5, 0")
    for i in range(0, 16, 2): P.I(f"v_max3_f32 v5, abs(v{ACC+i}), abs(v{ACC+i+1}), v5")
    P.I(f"v_cmp_lt_f32 vcc, {f32(60.0)}, v5")
    P.I(f"s_lshl_b32 s52, s44, 5\ns_lshl_b32 s53, s43, 2\ns_add_u32 s52, s52, s53\ns_add_u32 s52, s52, s{sW_}\ns_cmp_eq_u32 s46, 1\ns_cselect_b32 s53, 1024, 0\ns_add_u32 s52, s52, s53\ns_lshl_b32 s52, s52, 2")
    P.I(f"s_add_u32 s56, s{sWs}, {WS_FLAGS}\ns_addc_u32 s57, s{sWs+1}, 0\ns_mov_b32 s58, 8192\ns_mov_b32 s59, 0x20000")
    P.I("s_cmp_lg_u64 vcc, 0\ns_cselect_b32 s53, 1, 0\nv_mov_b32 v6, s53\nv_mov_b32 v7, s52")
    P.I("s_waitcnt lgkmcnt(0)\ns_barrier")
    for i in range(4): P.I(f"ds_read_b128 v[{RING+4*i}:{RING+4*i+3}], v{vOr} offset:{i*1024}")
    P.I("s_mov_b64 s[60:61], exec\ns_mov_b64 exec, 1\nbuffer_store_dword v6, v7, s[56:59], 0 offen\ns_mov_b64 exec, s[60:61]")
    for i in range(4):
        P.I(f"s_waitcnt lgkmcnt({3-i})")
        P.I(f"buffer_store_dwordx4 v[{RING+4*i}:{RING+4*i+3}], v{vO4[i]}, s[{sSRDO}:{sSRDO+3}], s51 offen {oflav}")
    ST.stamp()
    P.I("s_waitcnt vmcnt(0)")
    ST.stamp()
    ST.flush(sWs, sW_)
    P.L(f"{name}_end")
    P.I("s_endpgm")


def gen_joint(P, name="joint_kernel", stamps=False, kidx=3, oflav="sc1", LA=6, budget=24, WPACE=56, bdbg=False, skip=(), cpf=20480):
    ST = Stamps(P, stamps, kidx)
    vLane = 2
    sWs, sW_ = 20, 28
    sCA, sCB, sWO, sOUT = 8, 12, 16, 24
    sRow, sOut0 = 30, 31
    vL32, vL16, vCBr = 3, 4, 248
    vJw = list(range(8, 16)); vJr = list(range(16, 24)); vOw = [24, 25, 26, 27]; vOr, vOs = 28, 29
    E = 32
    CAR = [96, 104]
    ACC = [112, 144]
    RING = 176
    X = [208, 216]
    PK = [224, 228]
    OP = 232
    P.raw(f".globl {name}\n.p2align 8\n.type {name},@function\n{name}:")
    P.I("s_and_b32 s41, s2, 7\ns_lshr_b32 s42, s2, 3\ns_lshr_b32 s43, s41, 1\ns_lshl_b32 s44, s42, 2\ns_add_u32 s43, s43, s44")
    P.I(f"s_cmp_ge_u32 s43, 126\ns_cbranch_scc1 {name}_end")
    ST.stamp()
    P.I(f"s_load_dwordx2 s[{sWs}:{sWs+1}], s[0:1], 72\ns_load_dwordx2 s[4:5], s[0:1], 56")
    P.I(f"v_lshrrev_b32 v1, 6, v0\nv_and_b32 v{vLane}, 63, v0")
    P.I("s_and_b32 s45, s41, 1")
    P.I(f"v_readfirstlane_b32 s{sW_}, v1")
    if cpf: code_prefetch(P, name, 4, name + '_slow', vLane, 5, 249, swave=sW_)
    P.I("s_cmp_ge_u32 s43, 63\ns_cselect_b32 s46, 1, 0\ns_cselect_b32 s47, 63, 0\ns_sub_u32 s43, s43, s47\ns_lshl_b32 s43, s43, 4")
    P.I(f"v_lshlrev_b32 v{vL32}, 5, v{vLane}\nv_lshlrev_b32 v{vL16}, 4, v{vLane}")
    P.I("s_waitcnt lgkmcnt(0)")
    P.I(f"s_mul_i32 s47, s46, 2048000\ns_add_u32 s47, s47, {WS_CA}\ns_add_u32 s{sCA}, s{sWs}, s47\ns_addc_u32 s{sCA+1}, s{sWs+1}, 0\ns_mov_b32 s{sCA+2}, 2048000\ns_mov_b32 s{sCA+3}, 0x20000")
    P.I(f"s_lshl_b32 s47, s46, 14\ns_add_u32 s47, s47, {WS_CB}\ns_add_u32 s{sCB}, s{sWs}, s47\ns_addc_u32 s{sCB+1}, s{sWs+1}, 0\ns_mov_b32 s{sCB+2}, 16384\ns_mov_b32 s{sCB+3}, 0x20000")
    P.I(f"s_lshl_b32 s47, s45, 2\ns_add_u32 s47, s47, s{sW_}\ns_lshl_b32 s47, s47, 16\ns_add_u32 s47, s47, {WS_WO}")
    P.I(f"s_add_u32 s{sWO}, s{sWs}, s47\ns_addc_u32 s{sWO+1}, s{sWs+1}, 0\ns_mov_b32 s{sWO+2}, 65536\ns_mov_b32 s{sWO+3}, 0x20000")
    P.I(f"s_mul_i32 s47, s46, 8192000\ns_add_u32 s{sOUT}, s4, s47\ns_addc_u32 s{sOUT+1}, s5, 0\ns_mov_b32 s{sOUT+2}, 8192000\ns_mov_b32 s{sOUT+3}, 0x20000")
    P.I(f"s_add_u32 s{sRow}, s43, s{sW_}\ns_lshl_b32 s{sRow}, s{sRow}, 11")
    P.I(f"s_lshl_b32 s{sOut0}, s43, 13\ns_lshl_b32 s47, s45, 9\ns_add_u32 s{sOut0}, s{sOut0}, s47\ns_lshl_b32 s47, s{sW_}, 7\ns_add_u32 s{sOut0}, s{sOut0}, s47")
    T = Tracker(P)
    def ca_load(r, dst, tag='CA'):
        P.I(f"s_add_u32 s36, s{sRow}, {r*4*2048}")
        for h in range(2):
            P.I(f"buffer_load_dwordx4 v[{dst+4*h}:{dst+4*h+3}], v{vL32}, s[{sCA}:{sCA+3}], s36 offen offset:{16*h}")
            T.vm((tag, r, h))
    P.I(f"s_mul_i32 s47, s46, 1000\ns_add_u32 s47, s47, s43\ns_lshr_b32 s47, s47, 6\ns_lshl_b32 s47, s47, 7")
    P.I(f"s_add_u32 s56, s{sWs}, {WS_FLAGS}\ns_addc_u32 s57, s{sWs+1}, 0\ns_mov_b32 s58, 4224\ns_mov_b32 s59, 0x20000")
    P.I(f"v_lshlrev_b32 v5, 2, v{vLane}\nv_and_b32 v6, 31, v{vLane}\nv_lshlrev_b32 v6, 2, v6")
    P.I(f"buffer_load_dword v30, v5, s[56:59], s47 offen"); T.vm('FL0')
    P.I(f"s_mov_b32 s47, 4096\nbuffer_load_dword v31, v6, s[56:59], s47 offen"); T.vm('FL1')
    CBL = 81920
    P.I(f"s_lshl_b32 s47, s{sW_}, 12\ns_add_u32 s48, s47, {CBL}")
    for k in range(4):
        P.I(f"s_add_u32 m0, s48, {k*1024}\ns_add_u32 s36, s47, {k*1024}")
        P.I(f"buffer_load_dwordx4 v{vL16}, s[{sCB}:{sCB+3}], s36 offen lds"); T.vm(('CB', k))
    ca_load(0, CAR[0]); ca_load(1, CAR[1])
    Wq = list(range(64))
    def wload():
        f = Wq.pop(0)
        if f % 4 == 0: P.I(f"s_mov_b32 s37, {f*1024}")
        P.I(f"buffer_load_dwordx4 a[{4*f}:{4*f+3}], v{vL16}, s[{sWO}:{sWO+3}], s37 offen offset:{(f&3)*1024}")
        T.vm(('W', f))
    for _ in range(4): wload()
    P.I(f"s_and_b32 s47, s{sW_}, 1\ns_lshl_b32 s47, s47, 3\ns_lshl_b32 s48, s{sW_}, 13")
    for u in range(8):
        P.I(f"s_add_u32 s49, s47, {u}\nv_xor_b32 v5, s49, v{vLane}\nv_lshlrev_b32 v5, 4, v5\ns_add_u32 s49, s48, {u*1024}\nv_add_u32 v{vJw[u]}, s49, v5")
        if u % 3 == 2: wload()
    P.I(f"v_and_b32 v5, 31, v{vLane}\nv_lshrrev_b32 v6, 5, v{vLane}\nv_and_b32 v7, 15, v5\nv_lshlrev_b32 v1, 10, v5")
    for q in range(8):
        P.I(f"v_add_u32 v0, {2*q}, v6\nv_xor_b32 v0, v0, v7\nv_lshl_add_u32 v{vJr[q]}, v0, 4, v1")
        if q % 4 == 3: wload()
    P.I(f"s_lshl_b32 s49, s{sW_}, 12\ns_add_u32 s49, s49, 65536")
    P.I(f"v_and_b32 v7, 7, v5\nv_xor_b32 v7, v7, v6\nv_lshlrev_b32 v7, 4, v7\nv_lshl_add_u32 v7, v5, 7, v7\nv_add_u32 v7, s49, v7")
    for i in range(4): P.I(f"v_xor_b32 v{vOw[i]}, {32*i}, v7")
    P.I(f"v_add_u32 v{vOr}, s49, v{vL16}")
    P.I(f"v_lshrrev_b32 v5, 3, v{vLane}\nv_xor_b32 v6, v5, v{vLane}\nv_and_b32 v6, 7, v6\nv_lshlrev_b32 v6, 4, v6\nv_lshl_add_u32 v{vOs}, v5, 10, v6")
    P.I(f"v_add_u32 v{vCBr}, {CBL}, v{vL32}")
    wload()
    T.need_vm('FL0', 'FL1', *[('CB', k) for k in range(4)])
    P.I("v_or_b32 v30, v30, v31\nv_cmp_ne_u32 vcc, 0, v30")
    P.I("s_barrier")
    for u in range(8):
        for h in range(2):
            P.I(f"ds_read_b128 v[{E+8*u+4*h}:{E+8*u+4*h+3}], v{vL32} offset:{CBL - 65536 + u*2048 + 16*h}" if False else
                f"ds_read_b128 v[{E+8*u+4*h}:{E+8*u+4*h+3}], v{vCBr} offset:{u*2048 + 16*h}")
            T.lds(('E', u, h))
    P.I(f"s_cbranch_vccnz {name}_slow")
    st0 = (list(T.vq), list(T.lq), set(T.done), list(Wq))

    def variant(slow):
        T.vq, T.lq, T.done = list(st0[0]), list(st0[1]), set(st0[2])
        Wq[:] = st0[3]
        T.start_record()
        def prod_ops(r):
            ops = []
            ca = CAR[r & 1]
            def need_ca():
                T.need_vm(('CA', r, 0), ('CA', r, 1))
            ops.append((0, need_ca))
            if not slow:
                for i in range(8): ops.append((8, lambda i=i: P.I(f"v_exp_f32 v{ca+i}, v{ca+i}")))
            for u in range(8):
                x = X[u & 1]; pk = PK[u & 1]
                if not slow:
                    for i in range(8): ops.append((4, lambda i=i, x=x, u=u: P.I(f"v_fma_f32 v{x+i}, v{ca+i}, v{E+8*u+i}, 1.0")))
                else:
                    for i in range(8): ops.append((4, lambda i=i, x=x, u=u: P.I(f"v_add_f32 v{x+i}, v{ca+i}, v{E+8*u+i}")))
                    for i in range(8): ops.append((8, lambda i=i, x=x: P.I(f"v_exp_f32 v{x+i}, v{x+i}")))
                    for i in range(8): ops.append((4, lambda i=i, x=x: P.I(f"v_add_f32 v{x+i}, 1.0, v{x+i}")))
                for i in range(8): ops.append((8, lambda i=i, x=x: P.I(f"v_rcp_f32 v{x+i}, v{x+i}")))
                for i in range(8): ops.append((4, lambda i=i, x=x: P.I(f"v_fma_f32 v{x+i}, v{x+i}, -2.0, 1.0")))
                for k in range(4): ops.append((4, lambda k=k, x=x, pk=pk: P.I(f"v_cvt_pk_bf16_f32 v{pk+k}, v{x+2*k}, v{x+2*k+1}")))
                def wr(u=u, pk=pk):
                    if 'jw' in skip: return
                    P.I(f"ds_write_b128 v{vJw[u]}, v[{pk}:{pk+3}] offset:{(r&1)*32768}")
                    T.lds(('JW', r, u))
                ops.append((12, wr))
            if 'valu' in skip and r > 0: ops = [o for o in ops if o[1].__name__ in ('wr', 'need_ca')]
            return ops
        def epi_ops(r, g0=0):
            ops = []
            class L(list):
                pass
            tmin = [g0]
            def add(c, fn): ops.append((tmin[0], c, fn))
            a = ACC[r & 1]
            for vt in range(2):
                for jj in range(4):
                    for k in range(2):
                        d = OP + (vt * 2 + (jj >> 1)) * 4 + (jj & 1) * 2 + k
                        src = a + vt * 16 + jj * 4 + 2 * k
                        add(4, lambda d=d, src=src: P.I(f"v_cvt_pk_bf16_f32 v{d}, v{src}, v{src+1}"))
            add(4, lambda: P.I("s_nop 1"))
            for g in range(4):
                b = OP + 4 * g
                add(4, lambda b=b: P.I(f"v_permlane32_swap_b32 v{b}, v{b+2}"))
                add(4, lambda b=b: P.I(f"v_permlane32_swap_b32 v{b+1}, v{b+3}"))
            for g in range(4):
                def wr(g=g):
                    P.I(f"ds_write_b128 v{vOw[g]}, v[{OP+4*g}:{OP+4*g+3}]"); T.lds(('OW', r, g))
                tmin[0] = g0 + 4 + g if g0 else 0
                add(12, wr)
            tmin[0] = g0 + 11 if g0 else 0
            for i in range(4):
                def rd(i=i):
                    if i == 0: T.need_lds(*[('OW', r, g) for g in range(4)])
                    P.I(f"ds_read_b128 v[{OP+4*i}:{OP+4*i+3}], v{vOr} offset:{i*1024}"); T.lds(('OR', r, i))
                add(4, rd)
            for i in range(4):
                def st(i=i):
                    T.need_lds(('OR', r, i))
                    P.I(f"s_add_u32 s36, s{sOut0}, {(r*32 + 8*i)*1024}")
                    P.I(f"buffer_store_dwordx4 v[{OP+4*i}:{OP+4*i+3}], v{vOs}, s[{sOUT}:{sOUT+3}], s36 offen {oflav}")
                    T.vm(('OS', r, i))
                tmin[0] = g0 + 15 + i if g0 else 0
                add(8, st)
            return ops
        def bread(G):
            r, s = G >> 5, G & 31
            g = RING + (G % 8) * 4
            P.I(f"ds_read_b128 v[{g}:{g+3}], v{vJr[s&7]} offset:{(r&1)*32768 + (s>>3)*256}")
            T.lds(('B', G))
        pro = []
        for u in range(8):
            pro.append((0, lambda u=u: T.need_lds(('E', u, 0), ('E', u, 1))))
            if not slow:
                for i in range(8): pro.append((8, lambda i=i, u=u: P.I(f"v_exp_f32 v{E+8*u+i}, v{E+8*u+i}")))
        pro += prod_ops(0)
        acc_c = 0
        for c, f in pro:
            f(); acc_c += c
            if acc_c >= WPACE and Wq:
                wload(); acc_c = 0
        for i in range(32): P.I(f"v_mov_b32 v{ACC[0]+i}, 0")
        T.all_lds(); P.I("s_barrier")
        for G in range(LA): bread(G)
        ST2 = None
        V = [(4, lambda: ca_load(2, CAR[0]))] + prod_ops(1); Eq = []
        if not slow: ST.stamp(0)
        BAR = 32 - LA
        credit = 0
        for G in range(128):
            r, s = G >> 5, G & 31
            if s == BAR and r < 3:
                while V:
                    c, f = V.pop(0); f()
                T.all_lds(); P.I("s_barrier")
                if bdbg and not slow: ST.stamp()
                if r + 2 <= 3:
                    V = ([(4, lambda r=r: ca_load(r + 3, CAR[(r + 3) & 1]))] if r + 3 <= 3 else []) + prod_ops(r + 2)
                credit = 0
            if s == 4 and r >= 1:
                Eq = epi_ops(r - 1, G) if 'epi' not in skip else []
            if s == 0 and r >= 1:
                pass
            for vt in range(2):
                f = s * 2 + vt
                if r == 0: T.need_vm(('W', f))
                if vt == 0: T.need_lds(('B', G))
                a = ACC[r & 1] + 16 * vt
                g = RING + (G % 8) * 4
                if s == 0 and r >= 1:
                    P.I(f"v_mfma_f32_32x32x16_bf16 v[{a}:{a+15}], a[{4*f}:{4*f+3}], v[{g}:{g+3}], 0")
                else:
                    P.I(f"v_mfma_f32_32x32x16_bf16 v[{a}:{a+15}], a[{4*f}:{4*f+3}], v[{g}:{g+3}], v[{a}:{a+15}]")
                credit += budget
                if r == 0 and Wq and vt == 1:
                    wload(); credit -= 4
                if vt == 0 and G + LA < 128 and not (r < 3 and s + LA >= 32 and s < BAR):
                    bread(G + LA); credit -= 4
                while credit > 0:
                    if Eq and Eq[0][0] <= G:
                        _, c, fn = Eq.pop(0)
                    elif V:
                        c, fn = V.pop(0)
                    else:
                        break
                    fn(); credit -= c
                credit = min(credit, budget)
        assert not V
        while Eq:
            _, c, f = Eq.pop(0); f()
        if not slow:
            if bdbg: P.I("s_memtime s[100:101]")
            else: ST.stamp(1)
        P.I("s_nop 7\ns_nop 7")
        for _, c, f in epi_ops(3): f()
        if not slow and not bdbg: ST.stamp()
        P.I("s_waitcnt vmcnt(0)")
        if not slow and not bdbg: ST.stamp()
    variant(False)
    ST.flush(sWs, sW_)
    P.I("s_endpgm")
    P.L(f"{name}_slow")
    variant(True)
    P.L(f"{name}_end")
    P.I("s_endpgm")
```
